```python
import torch

def _softmax(x, axis=-1):
    return torch.softmax(x, dim=axis)

def _gelu(x):
    return torch.nn.functional.gelu(x, approximate='tanh')

def _silu(x):
    return torch.nn.functional.silu(x)

def _sigmoid(x):
    return torch.sigmoid(x)

def _layernorm(x, axis=-1, eps=1e-05):
    m = x.mean(dim=axis, keepdim=True)
    v = x.var(dim=axis, keepdim=True, unbiased=False)
    return (x - m) / torch.sqrt(v + eps)

def _scatter_add(tgt, idx, src, axis=0):
    return tgt.clone().index_add_(axis, idx, src)

def _segment_sum(src, seg, n):
    out = torch.zeros((n,) + src.shape[1:], dtype=src.dtype)
    return out.index_add_(0, seg, src)

def _pad(x, pw):
    flat = tuple((v for pair in reversed(pw) for v in pair))
    return torch.nn.functional.pad(x, flat)
kernel_name = 'gated_mix__memory_aug_recurrent_mem_tr__grouped_kv_mqa__prompt'

def setup_inputs():

    _w = lambda a: (lambda t: t.to(torch.bfloat16) if t.is_floating_point() else t)(torch.as_tensor(a))

    def _A_setup():
        B, S, Dm = (1, 2048, 1024)
        H, Dh = (32, 128)
        M, seg = (8, 32)
        seg = min(seg, S)
        S = S // seg * seg
        return {'x': _w((lambda *s: torch.randn(*s, dtype=torch.bfloat16) * 0.05)(B, S, Dm)), 'mem0': _w((lambda *s: torch.randn(*s, dtype=torch.bfloat16) * 0.4)(B, M, Dm)), 'Wq': _w((lambda *s: torch.randn(*s, dtype=torch.bfloat16) * 6.4)(Dm, H, Dh) * Dm ** (-0.5)), 'Wk': _w((lambda *s: torch.randn(*s, dtype=torch.bfloat16) * 6.4)(Dm, H, Dh) * Dm ** (-0.5)), 'Wv': _w((lambda *s: torch.randn(*s, dtype=torch.bfloat16) * 0.4)(Dm, H, Dh) * Dm ** (-0.5)), 'Wo': _w((lambda *s: torch.randn(*s, dtype=torch.bfloat16) * 0.4)(H, Dh, Dm) * (H * Dh) ** (-0.5)), 'seg_len': seg}
    _A_in = _A_setup()

    def _B_setup():
        B, S, D, H = (1, 2048, 1024, 32)
        Dh = D // H
        return {'x': _w((lambda *s: torch.randn(*s, dtype=torch.bfloat16) * 0.05)(B, S, D)), 'wq': _w((lambda *s: torch.randn(*s, dtype=torch.bfloat16) * 0.8)(D, H * Dh)), 'wk': _w((lambda *s: torch.randn(*s, dtype=torch.bfloat16) * 0.8)(D, Dh)), 'wv': _w((lambda *s: torch.randn(*s, dtype=torch.bfloat16) * 0.05)(D, Dh)), 'wo': _w((lambda *s: torch.randn(*s, dtype=torch.bfloat16) * 0.05)(H * Dh, D))}
    _B_in = _B_setup()
    return {'A_x': _A_in['x'], 'A_mem0': _A_in['mem0'], 'A_Wq': _A_in['Wq'], 'A_Wk': _A_in['Wk'], 'A_Wv': _A_in['Wv'], 'A_Wo': _A_in['Wo'], 'A_seg_len': _A_in['seg_len'], 'B_x': _B_in['x'], 'B_wq': _B_in['wq'], 'B_wk': _B_in['wk'], 'B_wv': _B_in['wv'], 'B_wo': _B_in['wo'], 'gate_w': _w((lambda *s: torch.randn(*s, dtype=torch.bfloat16) * 0.05)(1024) * 16.0)}

def reference(A_x, A_mem0, A_Wq, A_Wk, A_Wv, A_Wo, A_seg_len, B_x, B_wq, B_wk, B_wv, B_wo, gate_w):

    def _A_ref(x, mem0, Wq, Wk, Wv, Wo, seg_len):
        B, S, Dm = x.shape
        H, Dh = (Wq.shape[1], Wq.shape[2])
        M = mem0.shape[1]
        scale = Dh ** (-0.5)
        n_seg = S // seg_len
        L = M + seg_len
        idx = torch.arange(L)
        mask = (idx[:, None] < M) | (idx[:, None] >= idx[None, :])
        mem = mem0
        outs = []
        for s in range(n_seg):
            xs = x[:, s * seg_len:(s + 1) * seg_len, :].clone()
            h = torch.concatenate([mem, xs], axis=1)
            q = torch.einsum('btd,dhe->bhte', h, Wq)
            k = torch.einsum('btd,dhe->bhte', h, Wk)
            v = torch.einsum('btd,dhe->bhte', h, Wv)
            scores = torch.einsum('bhqe,bhke->bhqk', q, k) * scale
            scores = torch.where(mask[None, None], scores, -1000000000.0)
            p = _softmax(scores, axis=-1)
            o = torch.einsum('bhqk,bhke->bhqe', p, v)
            o = torch.einsum('bhte,hed->btd', o, Wo)
            mem = o[:, :M, :].clone()
            outs.append(o[:, M:, :])
        return torch.concatenate(outs, axis=1)

    def _B_ref(x, wq, wk, wv, wo):
        B, S, D = x.shape
        H = 32
        Dh = D // H
        q = (lambda x, *d: x.permute(*d))((x @ wq).reshape(B, S, H, Dh), 0, 2, 1, 3)
        k = x @ wk
        v = x @ wv
        scores = torch.einsum('bhqd,bkd->bhqk', q, k) * Dh ** (-0.5)
        p = _softmax(scores, axis=-1)
        o = torch.einsum('bhqk,bkd->bhqd', p, v)
        return (lambda x, *d: x.permute(*d))(o, 0, 2, 1, 3).reshape(B, S, H * Dh) @ wo
    x = A_x
    g = _sigmoid((x * gate_w).sum(-1, keepdims=True))
    a = _A_ref(x, A_mem0, A_Wq, A_Wk, A_Wv, A_Wo, A_seg_len)
    b = _B_ref(x, B_wq, B_wk, B_wv, B_wo)
    return g * a + (1 - g) * b
```

```python
from common import *
from worker1 import LANE
from worker2 import fbits, xhalf, maxn
import math
NLO,NHI=0x00ff00ff,0xff00ff00
def st_intra(a,txt):
    L=a.lab('F'); E=a.lab('E')
    a(f"s_cmp_eq_u32 s{sSLOW}, 0\ns_cbranch_scc1 {L}")
    for t in txt: a(t+" sc1")
    a(f"s_branch {E}\n{L}:")
    for t in txt: a(t)
    a(f"{E}:")
def poll(a,loads,regs,vt):
    L=a.lab('P')
    a(f"s_mov_b32 s{sSPIN}, {SPINMAX}\n{L}:")
    spin_check(a)
    for t in loads: a(t+" sc1")
    a("s_waitcnt vmcnt(0)")
    regs=list(regs); h=len(regs)//2
    for t,rs in ((vt,regs[:h]),(vt+1,regs[h:])):
        a(f"v_max3_u32 v{t}, v{rs[0]}, v{rs[1]}, v{rs[2]}")
    for k in range(3,h,2):
        for t,rs in ((vt,regs[:h]),(vt+1,regs[h:])):
            a(f"v_max3_u32 v{t}, v{t}, v{rs[k]}, v{rs[k+1]}" if k+1<h else f"v_max_u32 v{t}, v{t}, v{rs[k]}")
    a(f"v_max_u32 v{vt}, v{vt}, v{vt+1}\nv_cmp_eq_u32 vcc, -1, v{vt}\ns_nop 0\ns_cbranch_vccnz {L}")
def slotbase(a,d,add,off,extra):
    a(f"s_add_u32 s39, s60, {add}\ns_and_b32 s39, s39, 3\ns_lshl_b32 s39, s39, 19\ns_add_u32 s39, s39, s{extra}")
    base(a,d,sWS,MBOX+off,soff=39)
def chain(a,DIAG):
    a(f"""s_lshr_b32 s50, s{sROLE}, 5
    s_and_b32 s51, s{sROLE}, 31
    s_and_b32 s52, s51, 3
    s_lshr_b32 s53, s{sROLE}, 2
    s_lshl_b32 s55, s{sWAVE}, 14
    s_lshl_b32 s70, s{sROLE}, 11
    s_lshl_b32 s71, s{sROLE}, 9
    s_lshl_b32 s72, s{sROLE}, 10
    s_lshl_b32 s73, s50, 14
    s_mov_b32 s74, {NLO}
    s_mov_b32 s75, {NLO}
    s_mov_b32 s76, {NHI}
    s_mov_b32 s77, {NHI}
    s_mov_b32 s78, 0
    s_mov_b32 s79, -1
    s_mov_b32 s60, 0
    v_bfe_u32 v58, v{LANE}, 2, 2
    v_lshrrev_b32 v59, 4, v{LANE}
    v_lshl_add_u32 v58, v59, 2, v58
    v_lshlrev_b32 v58, 6, v58
    v_add_u32 v58, s55, v58
    v_and_b32 v60, 3, v{LANE}
    v_lshl_add_u32 v61, v60, 3, v58
    v_and_b32 v60, 1, v{LANE}
    v_lshl_add_u32 v58, v60, 3, v58
    v_bfe_u32 v60, v{LANE}, 1, 1
    v_lshl_add_u32 v58, v60, 5, v58
    v_and_b32 v60, 7, v{LANE}
    v_lshlrev_b32 v60, 4, v60
    v_lshl_add_u32 v56, v59, 7, v60
    s_cmp_ge_u32 s{sWAVE}, 4
    s_cbranch_scc1 L_C_B""")
    def W(tile,ks):
        i=(tile*8+ks)*4
        return ('a',i) if i<128 else ('v',i-64)
    a(f"s_lshl_b32 s39, s{sWAVE}, 21\ns_lshl_b32 s43, s{sROLE}, 6\ns_add_u32 s43, s43, s39")
    for m,sw in enumerate((sWQ,sWK,sWV)):
        base(a,56,sw,soff=43)
        slab_dma(a,56,8192,256,55,2,LANE)
        a("s_waitcnt vmcnt(0)")
        for T in range(2):
            for ks in range(8):
                k,r=W(2*m+T,ks)
                for h in range(2):
                    a(f"ds_read_b64_tr_b16 {k}[{r+2*h}:{r+2*h+1}], v{58 if m<2 else 61} offset:{(32*ks+16*h)*64+(16 if m<2 else 32)*T}")
        a("s_waitcnt lgkmcnt(0)")
    a(f"""v_and_b32 v60, 7, v{LANE}
    v_lshlrev_b32 v60, 11, v60
    v_lshl_add_u32 v60, v59, 3, v60
    s_lshl_b32 s39, s{sWAVE}, 9""")
    base(a,56,sMEM0,soff=39)
    a(f"s_lshl_b32 s39, s{sWAVE}, 12\nv_add_u32 v56, s39, v56\ns_mul_i32 s39, s{sWAVE}, 3072\nv_lshl_add_u32 v57, v{LANE}, 4, s39\nv_mov_b32 v63, v60\ns_barrier\ns_barrier")
    for ks in range(8): a(f"global_load_dwordx2 {vr(4*ks,2)}, v63, s[56:57] offset:{64*ks}\nglobal_load_dwordx2 {vr(4*ks+2,2)}, v63, s[56:57] offset:{64*ks+32}")
    a("s_waitcnt vmcnt(0)\ns_branch L_CQ_M\nL_CQ:")
    slotbase(a,56,0,MM_O,73)
    poll(a,[f"global_load_dwordx4 {vr(4*ks)}, v56, s[56:57] offset:{512*ks}" for ks in range(8)],range(32),58)
    a("L_CQ_M:")
    for ks in range(8):
        for tile in range(6):
            k,r=W(tile,ks); w=f"{k}[{r}:{r+3}]"; d=vr(32+4*tile); c='0' if ks==0 else d
            a(f"v_mfma_f32_16x16x32_bf16 {d}, {w}, {vr(4*ks)}, {c}" if tile<4 else f"v_mfma_f32_16x16x32_bf16 {d}, {vr(4*ks)}, {w}, {c}")
    a.nop(4)
    for p in range(3):
        if p==2: a("s_nop 0")
        for i in range(4): a(f"v_cndmask_b32 v{32+8*p+i}, v{32+8*p+i}, v{36+8*p+i}, s[{76 if p<2 else 78}:{77 if p<2 else 79}]")
        a(f"ds_write_b128 v57, {vr(32+8*p)} offset:{p*1024}")
    a("s_waitcnt lgkmcnt(0)\ns_barrier\ns_cmp_eq_u32 s60, 63\ns_cbranch_scc1 L_END\ns_barrier\ns_add_u32 s60, s60, 1\ns_branch L_CQ")
    a(f"""L_C_B:
    s_sub_u32 s54, s{sWAVE}, 4
    s_lshl_b32 s39, s50, 21
    s_lshl_b32 s43, s54, 19
    s_add_u32 s39, s39, s43
    s_lshl_b32 s43, s51, 6
    s_add_u32 s39, s39, s43""")
    base(a,56,sWO,soff=39)
    slab_dma(a,56,2048,256,55,2,LANE)
    a(f"v_lshlrev_b32 v1, 4, v{LANE}\nv_mov_b32 v4, -1\nv_mov_b32 v5, -1\nv_mov_b32 v6, -1\nv_mov_b32 v7, -1\nv_and_b32 v2, 0x1ff, v1\ns_mov_b32 s60, s54")
    slotbase(a,56,0,SC_O,70); a("global_store_dwordx4 v1, v[4:7], s[56:57] sc1\nglobal_store_dwordx4 v1, v[4:7], s[56:57] offset:1024 sc1")
    slotbase(a,56,0,OM_O,71); a("global_store_dwordx4 v2, v[4:7], s[56:57] sc1")
    slotbase(a,56,0,PM_O,72); a("global_store_dwordx4 v1, v[4:7], s[56:57] sc1")
    slotbase(a,56,0,MM_O,71); a("global_store_dwordx4 v2, v[4:7], s[56:57] sc1\ns_mov_b32 s60, 0\ns_waitcnt vmcnt(0)")
    for T in range(2):
        for ks in range(8):
            for h in range(2): a(f"ds_read_b64_tr_b16 {ar((T*8+ks)*4+2*h,2)}, v61 offset:{(32*ks+16*h)*64+32*T}")
    a(f"""s_waitcnt lgkmcnt(0)
    v_mov_b32 v8, v56
    s_lshl_b32 s39, s54, 12
    v_add_u32 v9, s39, v56
    s_lshl_b32 s39, s54, 10
    s_add_u32 s39, s39, 0x4000
    v_add_u32 v10, s39, v1
    v_lshrrev_b32 v13, 5, v{LANE}
    v_lshlrev_b32 v13, 10, v13
    v_bfe_u32 v14, v{LANE}, 4, 1
    v_lshl_add_u32 v13, v14, 9, v13
    v_and_b32 v14, 7, v{LANE}
    v_bfe_u32 v15, v{LANE}, 3, 1
    v_lshl_add_u32 v14, v15, 4, v14
    v_lshl_add_u32 v11, v14, 4, v13
    v_and_b32 v14, 15, v{LANE}
    v_lshl_add_u32 v12, v14, 4, v13
    v_lshlrev_b32 v14, 4, v14
    v_bfe_u32 v13, v{LANE}, 4, 1
    v_lshl_add_u32 v13, v13, 3, v14
    v_lshrrev_b32 v14, 5, v{LANE}
    v_lshl_add_u32 v13, v14, 8, v13
    v_lshl_add_u32 v14, v15, 3, v56
    s_barrier
    s_cmp_lg_u32 s54, 0
    s_cbranch_scc1 L_C_I""")
    add1(a,D_CINIT,16); wait_ge(a,D_CINIT,128,16,sleep=1)
    KX,VX=64,72
    def prefetch():
        S=a.lab('K')
        a(f"s_and_b32 s39, s61, 7\ns_cmp_lg_u32 s39, 0\ns_cbranch_scc1 {S}\ns_lshr_b32 s62, s61, 1")
        wait_ge(a,D_KV,32,16,sleep=1,soff=62)
        a(f"{S}:\ns_lshl_b32 s39, s61, 18\ns_lshl_b32 s43, s{sROLE}, 11\ns_add_u32 s43, s43, s39")
        base(a,56,sWS,KF,soff=43); base(a,58,sWS,VF,soff=43)
        a(f"""global_load_dwordx4 {vr(KX)}, v11, s[56:57] sc1
        global_load_dwordx4 {vr(KX+4)}, v11, s[56:57] offset:128 sc1
        global_load_dwordx4 {vr(VX)}, v12, s[58:59] sc1
        global_load_dwordx4 {vr(VX+4)}, v12, s[58:59] offset:256 sc1""")
    a("s_mov_b32 s61, 0"); prefetch()
    a("L_C_I:\ns_barrier")
    if DIAG: stamp(a,1,16,4)
    a("L_CW:\ns_barrier\ns_cmp_lg_u32 s54, 0\ns_cbranch_scc1 L_CW_O")
    for kq in range(4): a(f"ds_read_b128 {vr(16+8*kq)}, v1 offset:{kq*3072}\nds_read_b128 {vr(20+8*kq)}, v1 offset:{kq*3072+1024}")
    for kq in range(4): a(f"ds_read_b128 {vr(48+4*kq)}, v1 offset:{kq*3072+2048}")
    slotbase(a,56,0,SC_O,70)
    a("s_lshl_b32 s39, s60, 16\ns_add_u32 s43, s39, s71"); base(a,58,sWS,KM,soff=43); base(a,62,sWS,VM,soff=43)
    a("s_waitcnt lgkmcnt(8)")
    for i in range(8): a(f"v_add_f32 v{16+i}, v{16+i}, v{24+i}")
    a("s_waitcnt lgkmcnt(4)")
    for i in range(8): a(f"v_add_f32 v{32+i}, v{32+i}, v{40+i}")
    for i in range(8): a(f"v_add_f32 v{16+i}, v{16+i}, v{32+i}")
    a("""v_cvt_pk_bf16_f32 v24, v16, v17
    v_cvt_pk_bf16_f32 v25, v18, v19
    v_cvt_pk_bf16_f32 v28, v20, v21
    v_cvt_pk_bf16_f32 v29, v22, v23
    s_nop 0
    v_mov_b32_dpp v26, v24 row_shl:8 row_mask:0xf bank_mask:0xf bound_ctrl:0
    v_mov_b32_dpp v27, v25 row_shl:8 row_mask:0xf bank_mask:0xf bound_ctrl:0
    v_mov_b32_dpp v30, v28 row_shl:8 row_mask:0xf bank_mask:0xf bound_ctrl:0
    v_mov_b32_dpp v31, v29 row_shl:8 row_mask:0xf bank_mask:0xf bound_ctrl:0
    s_waitcnt vmcnt(0)
    s_cmp_eq_u32 s60, 63
    s_cbranch_scc1 L_CA_V""")
    a(f"""v_mfma_f32_16x16x32_bf16 v[36:39], {vr(KX)}, v[24:27], 0
    v_mfma_f32_16x16x32_bf16 v[40:43], {vr(KX+4)}, v[24:27], 0
    v_mfma_f32_16x16x32_bf16 v[32:35], v[28:31], v[24:27], 0
    s_mov_b64 exec, s[74:75]
    s_nop 6""")
    st_intra(a,[f"global_store_dwordx4 v8, {vr(36)}, s[56:57] offset:512",f"global_store_dwordx4 v8, {vr(40)}, s[56:57] offset:1024",f"global_store_dwordx4 v8, {vr(32)}, s[56:57]"])
    a("L_CA_V:\ns_mov_b64 exec, s[74:75]\nglobal_store_dwordx4 v8, v[28:31], s[58:59] sc1\ns_mov_b64 exec, -1\ns_waitcnt lgkmcnt(0)")
    for i in range(4): a(f"v_add_f32 v{48+i}, v{48+i}, v{52+i}\nv_add_f32 v{56+i}, v{56+i}, v{60+i}")
    for i in range(4): a(f"v_add_f32 v{48+i}, v{48+i}, v{56+i}")
    a("""v_cvt_pk_bf16_f32 v44, v48, v49
    v_cvt_pk_bf16_f32 v45, v50, v51
    s_nop 0
    global_store_dwordx2 v13, v[44:45], s[62:63] sc1
    s_cmp_eq_u32 s60, 63
    s_cbranch_scc1 L_CA_F
    v_mov_b32 v46, v44
    v_mov_b32 v47, v45
    v_mov_b32 v48, v44
    v_mov_b32 v49, v45
    s_nop 1
    v_permlane32_swap_b32 v46, v48
    v_permlane32_swap_b32 v47, v49""")
    for p in range(1,4):
        a(f"s_xor_b32 s43, s{sROLE}, {p}\ns_lshl_b32 s43, s43, 11"); slotbase(a,62+2*p,0,SC_O,43)
    slotbase(a,56,0,OM_O,71)
    poll(a,[f"global_load_dwordx4 {vr(80+12*p+4*t)}, v8, s[{64+2*p}:{65+2*p}] offset:{512*t}" for p in range(3) for t in range(3)],range(80,116),16)
    for i in range(12): a(f"v_add_f32 v{32+i}, v{32+i}, v{80+i}\nv_add_f32 v{92+i}, v{92+i}, v{104+i}")
    a("v_mov_b32 v16, 0xff800000")
    for i in range(12): a(f"v_add_f32 v{32+i}, v{32+i}, v{92+i}")
    for i in range(4): a(f"v_cndmask_b32 v{32+i}, v{32+i}, v16, s[78:79]")
    def x4(op,v):
        xhalf(a,op,v,17)
        a(f"v_mov_b32 v17, v{v}\ns_nop 1\nv_permlane16_swap_b32 v17, v{v}\ns_nop 1\n{op} v{v}, v{v}, v17")
    maxn(a,16,range(32,44)); x4("v_max_f32",16)
    a(f"s_mov_b32 s39, {fbits(128**-0.5*math.log2(math.e))}\nv_mul_f32 v16, s39, v16")
    for i in range(12): a(f"v_fma_f32 v{32+i}, v{32+i}, s39, -v16")
    for i in range(12): a(f"v_exp_f32 v{32+i}, v{32+i}")
    a("s_nop 0")
    for i in range(6): a(f"v_cvt_pk_bf16_f32 v{50+i}, v{32+2*i}, v{33+2*i}")
    a(f"""v_add_f32 v16, v32, v33
    v_add_f32 v18, v34, v35
    v_mfma_f32_16x16x32_bf16 v[20:23], {vr(VX)}, v[52:55], 0
    v_mfma_f32_16x16x32_bf16 v[24:27], {vr(VX+4)}, v[52:55], 0""")
    for i in range(4): a(f"v_add_f32 v16, v16, v{36+2*i}\nv_add_f32 v18, v18, v{37+2*i}")
    a("""v_mfma_f32_16x16x16_bf16 v[20:23], v[46:47], v[50:51], v[20:23]
    v_mfma_f32_16x16x16_bf16 v[24:27], v[48:49], v[50:51], v[24:27]
    v_add_f32 v16, v16, v18""")
    x4("v_add_f32",16)
    a("v_rcp_f32 v16, v16\ns_nop 0")
    for i in range(8): a(f"v_mul_f32 v{20+i}, v16, v{20+i}")
    for i in range(4): a(f"v_cvt_pk_bf16_f32 v{28+i}, v{20+2*i}, v{21+2*i}")
    for i in range(4): a(f"v_min_u32 v{28+i}, -2, v{28+i}")
    a("s_mov_b64 exec, s[74:75]")
    st_intra(a,["global_store_dwordx4 v8, v[28:31], s[56:57]"])
    a("s_mov_b64 exec, -1\nL_CW_O:\ns_cmp_eq_u32 s60, 63\ns_cbranch_scc1 L_END")
    slotbase(a,56,0,OM_O,73)
    poll(a,[f"global_load_dwordx4 {vr(80+4*ks)}, v9, s[56:57] offset:{512*ks}" for ks in range(8)],range(80,112),16)
    for ks in range(8):
        for T in range(2): a(f"v_mfma_f32_16x16x32_bf16 {vr(20+4*T)}, {ar((T*8+ks)*4)}, {vr(80+4*ks)}, {'0' if ks==0 else vr(20+4*T)}")
    a.nop(8)
    for i in range(4): a(f"v_cndmask_b32 v{20+i}, v{20+i}, v{24+i}, s[76:77]")
    a("ds_write_b128 v10, v[20:23]\ns_waitcnt lgkmcnt(0)\ns_barrier\ns_cmp_eq_u32 s54, 1\ns_cbranch_scc1 L_CR\ns_cmp_lg_u32 s54, 0\ns_cbranch_scc1 L_CN")
    slotbase(a,56,2,SC_O,70); slotbase(a,58,2,OM_O,71)
    st_intra(a,["global_store_dwordx4 v1, v[4:7], s[56:57]","global_store_dwordx4 v1, v[4:7], s[56:57] offset:1024","global_store_dwordx4 v2, v[4:7], s[58:59]"])
    a("s_add_u32 s61, s60, 1"); prefetch()
    a("s_branch L_CN\nL_CR:")
    for w in range(4): a(f"ds_read_b128 {vr(16+4*w)}, v1 offset:{0x4000+w*1024}")
    slotbase(a,56,0,PM_O,72)
    for p in range(1,4):
        a(f"s_xor_b32 s43, s{sROLE}, {32*p}\ns_lshl_b32 s43, s43, 10"); slotbase(a,62+2*p,0,PM_O,43)
    a("s_waitcnt lgkmcnt(0)")
    for i in range(4): a(f"v_add_f32 v{16+i}, v{16+i}, v{20+i}\nv_add_f32 v{24+i}, v{24+i}, v{28+i}")
    for i in range(4): a(f"v_add_f32 v{16+i}, v{16+i}, v{24+i}")
    a("global_store_dwordx4 v1, v[16:19], s[56:57] sc1")
    slotbase(a,56,1,MM_O,71)
    poll(a,[f"global_load_dwordx4 {vr(32+4*p)}, v1, s[{64+2*p}:{65+2*p}]" for p in range(3)],range(32,44),20)
    for i in range(4): a(f"v_add_f32 v{16+i}, v{16+i}, v{32+i}\nv_add_f32 v{36+i}, v{36+i}, v{40+i}")
    for i in range(4): a(f"v_add_f32 v{16+i}, v{16+i}, v{36+i}")
    a("v_cvt_pk_bf16_f32 v20, v16, v17\nv_cvt_pk_bf16_f32 v21, v18, v19\nv_min_u32 v20, -2, v20\nv_min_u32 v21, -2, v21")
    st_intra(a,["global_store_dwordx2 v14, v[20:21], s[56:57]"])
    slotbase(a,56,2,PM_O,72); slotbase(a,58,3,MM_O,71)
    a("global_store_dwordx4 v1, v[4:7], s[56:57] sc1")
    st_intra(a,["global_store_dwordx4 v2, v[4:7], s[58:59]"])
    a(f"s_cmp_lg_u32 s{sROLE}, 0\ns_cbranch_scc1 L_CN"); add1(a,D_PROG,22)
    a("L_CN:\ns_add_u32 s60, s60, 1\ns_branch L_CW\nL_CA_F:\ns_waitcnt vmcnt(0)")
    add1(a,D_PROG,16)
    if DIAG: stamp(a,2,16,4)
    a("s_branch L_END")
```

```python
NAME="gated_mix__memory_aug_recurrent_mem_tr__grouped_kv_mqa__prompt"
MB=1<<20
QF,KF,VF,OA,OB=0,16*MB,32*MB,48*MB,64*MB
KBF=68*MB; VBF=KBF+128*1024; GATE=KBF+256*1024
KM,VM=72*MB,76*MB
MBOX=80*MB; SLOT=512*1024
SC_O,OM_O,PM_O,MM_O=0,256*1024,320*1024,448*1024
TS=84*MB
D_CNT,D_TOTAL,D_CINIT,D_KVB,D_PROG,D_KV,D_Q,D_OB,D_XA=0,32,36,40,44,64,96,128,160
sX,sMEM0,sWQ,sWK,sWV,sWO,sBWQ,sBWK,sBWV,sBWO,sGW,sOUT,sDBG,sWS=4,6,8,10,12,14,16,18,20,22,24,26,28,30
sSLOW,sROLE,sWAVE,sXCC,sTK,sG,sSPIN=32,33,34,35,36,37,38
SPINMAX=1<<19
class Asm:
    def __init__(s): s.l=[]; s.n=0
    def __call__(s,t):
        for x in t.strip('\n').split('\n'):
            x=x.strip()
            if x: s.l.append(x if x.endswith(':') else '  '+x)
    def lab(s,p='L'):
        s.n+=1; return f"{p}{s.n}"
    def nop(s,n):
        while n>0:
            k=min(n,16); s(f"s_nop {k-1}"); n-=k
    def text(s): return '\n'.join(s.l)+'\n'
def sp(r): return f"s[{r}:{r+1}]"
def vr(r,n=4): return f"v[{r}:{r+n-1}]"
def ar(r,n=4): return f"a[{r}:{r+n-1}]"
def base(a,d,src,off=None,soff=None):
    if soff is not None:
        a(f"s_add_u32 s{d}, s{src}, s{soff}\ns_addc_u32 s{d+1}, s{src+1}, 0"); src=d
    if off:
        a(f"s_add_u32 s{d}, s{src}, {off}\ns_addc_u32 s{d+1}, s{src+1}, 0"); src=d
    if src!=d: a(f"s_mov_b64 {sp(d)}, {sp(src)}")
def spin_check(a):
    a(f"s_sub_u32 s{sSPIN}, s{sSPIN}, 1\ns_cbranch_scc1 L_END")
def wait_ge(a,off,tgt,vt,sleep=4,soff=None,st=39):
    L=a.lab('W'); D=a.lab('WD')
    if soff is None: a(f"v_mov_b32 v{vt}, {off}")
    else: a(f"s_add_u32 s{st}, s{soff}, {off}\nv_mov_b32 v{vt}, s{st}")
    a(f"""s_mov_b32 s{sSPIN}, {SPINMAX}
    {L}:
    global_load_dword v{vt+1}, v{vt}, {sp(sDBG)} sc1
    s_waitcnt vmcnt(0)
    v_readfirstlane_b32 s{st}, v{vt+1}
    s_cmp_ge_u32 s{st}, {tgt}
    s_cbranch_scc1 {D}
    s_sleep {sleep}""")
    spin_check(a)
    a(f"s_branch {L}\n{D}:")
def wait_wg(a,off,tgt,vt,soff=None,sleep=4):
    S=a.lab('S')
    a(f"s_cmp_lg_u32 s{sWAVE}, 0\ns_cbranch_scc1 {S}")
    wait_ge(a,off,tgt,vt,sleep,soff)
    a(f"{S}:\ns_barrier")
def add1(a,off,vt,soff=None,st=39):
    if soff is None: a(f"v_mov_b32 v{vt}, {off}")
    else: a(f"s_add_u32 s{st}, s{soff}, {off}\nv_mov_b32 v{vt}, s{st}")
    a(f"""v_mov_b32 v{vt+1}, 1
    s_mov_b64 exec, 1
    global_atomic_add v{vt}, v{vt+1}, {sp(sDBG)} sc1
    s_mov_b64 exec, -1""")
def signal(a,off,vt,soff=None):
    S=a.lab('S')
    a(f"s_waitcnt vmcnt(0)\ns_barrier\ns_cmp_lg_u32 s{sWAVE}, 0\ns_cbranch_scc1 {S}")
    add1(a,off,vt,soff)
    a(f"{S}:")
def stamp(a,idx,vt,cond_wave=0):
    S=a.lab('T')
    a(f"""s_cmp_lg_u32 s{sWAVE}, {cond_wave}
    s_cbranch_scc1 {S}
    s_memrealtime s[98:99]
    s_lshl_b32 s96, s40, 7
    s_add_u32 s96, s96, {TS+idx*8}
    v_mov_b32 v{vt}, s96
    s_waitcnt lgkmcnt(0)
    v_mov_b32 v{vt+2}, s98
    v_mov_b32 v{vt+3}, s99
    global_store_dwordx2 v{vt}, v[{vt+2}:{vt+3}], {sp(sWS)}
    {S}:""")
def slab_dma(a,sb,ld,nrows,ldsoff_s,vt,lane):
    a(f"v_lshrrev_b32 v{vt}, 2, v{lane}\nv_and_b32 v{vt+1}, 3, v{lane}\nv_lshlrev_b32 v{vt+1}, 4, v{vt+1}")
    a(f"s_mov_b32 s39, {ld}\nv_mul_lo_u32 v{vt}, v{vt}, s39\nv_add_u32 v{vt}, v{vt}, v{vt+1}")
    for i in range(1,4): a(f"v_add_u32 v{vt+i}, {i*(16*ld-1024)}, v{vt}")
    a(f"s_mov_b64 s[94:95], {sp(sb)}\ns_mov_b32 m0, s{ldsoff_s}")
    for g in range(nrows//64):
        if g: a(f"s_add_u32 s94, s94, {64*ld}\ns_addc_u32 s95, s95, 0\ns_add_u32 m0, m0, 4096")
        a("s_nop 0")
        for i in range(4): a(f"global_load_lds_dwordx4 v{vt+i}, s[94:95] offset:{i*1024}")
```

```python
from common import *
def gemm(a,TM,TN,WM,swap,ldw,sxb,swb,lane,KS=16,accbase=0):
    WN=8//WM; MT=TM//WM//32; NT=TN//WN//32
    XI=TM//64; RB=TN*2; RPI=1024//RB; WI=64//RPI//8
    XSZ=TM*128; ST=XSZ+64*RB
    vXD,vWD,vXR,vWR,vF=2,6,10,14,32
    LPR=RB//16
    a(f"s_and_b32 s41, s{sWAVE}, {WM-1}\ns_lshr_b32 s42, s{sWAVE}, {WM.bit_length()-1}")
    a(f"""v_lshrrev_b32 v16, 3, v{lane}
    s_mul_i32 s43, s{sWAVE}, {8*XI}
    v_add_u32 v16, s43, v16
    v_and_b32 v17, 7, v{lane}""")
    for i in range(XI):
        a(f"""v_add_u32 v18, {8*i}, v16
        v_bfe_u32 v19, v18, 1, 3
        v_xor_b32 v19, v19, v17
        v_lshlrev_b32 v19, 4, v19
        v_lshl_add_u32 v{vXD+i}, v18, 11, v19""")
        if i: a(f"v_subrev_u32 v{vXD+i}, {1024*i}, v{vXD+i}")
    a(f"""v_lshrrev_b32 v16, {LPR.bit_length()-1}, v{lane}
    s_add_u32 s43, s{sWAVE}, s{sWAVE}
    s_lshl_b32 s43, s43, 2
    v_add_u32 v16, s43, v16
    v_and_b32 v17, {LPR-1}, v{lane}
    s_mov_b32 s44, {ldw}""")
    for i in range(WI):
        a(f"""v_add_u32 v18, {RPI*i}, v16
        v_and_b32 v19, 3, v18
        v_lshlrev_b32 v19, 2, v19
        v_xor_b32 v19, v19, v17
        v_lshlrev_b32 v19, 4, v19
        v_mul_lo_u32 v18, v18, s44
        v_add_u32 v{vWD+i}, v18, v19""")
        if i: a(f"v_subrev_u32 v{vWD+i}, {1024*i}, v{vWD+i}")
    a(f"""v_and_b32 v16, 31, v{lane}
    v_lshrrev_b32 v17, 5, v{lane}
    v_bfe_u32 v18, v16, 1, 3
    s_mul_i32 s43, s41, {MT*32*128}
    v_lshl_add_u32 v16, v16, 7, s43""")
    for ks in range(4):
        a(f"v_add_u32 v19, {2*ks}, v17\nv_xor_b32 v19, v19, v18\nv_lshl_add_u32 v{vXR+ks}, v19, 4, v16")
    a(f"""v_bfe_u32 v16, v{lane}, 2, 2
    v_lshrrev_b32 v17, 5, v{lane}
    v_lshl_add_u32 v17, v17, 3, v16
    v_mul_u32_u24 v17, {RB}, v17
    v_bfe_u32 v18, v{lane}, 4, 1
    v_lshlrev_b32 v18, 5, v18
    v_and_b32 v19, 3, v{lane}
    v_lshl_add_u32 v18, v19, 3, v18
    v_add_u32 v17, v17, v18
    v_add_u32 v17, {XSZ}, v17""")
    for nt in range(NT):
        a(f"s_mul_i32 s43, s42, {NT}\ns_add_u32 s43, s43, {nt}\nv_xor_b32 v19, s43, v16\nv_lshl_add_u32 v{vWR+nt}, v19, 6, v17")
    a(f"s_mul_i32 s45, s{sWAVE}, {XI*1024}\ns_mul_i32 s46, s{sWAVE}, {WI*1024}\ns_add_u32 s46, s46, {XSZ}")
    def dma():
        a("s_mov_b32 m0, s45\ns_nop 0")
        for i in range(XI): a(f"global_load_lds_dwordx4 v{vXD+i}, {sp(sxb)} offset:{i*1024}")
        a("s_mov_b32 m0, s46\ns_nop 0")
        for i in range(WI): a(f"global_load_lds_dwordx4 v{vWD+i}, {sp(swb)} offset:{i*1024}")
        a(f"s_add_u32 s{sxb}, s{sxb}, 128\ns_addc_u32 s{sxb+1}, s{sxb+1}, 0\ns_add_u32 s{swb}, s{swb}, {64*ldw}\ns_addc_u32 s{swb+1}, s{swb+1}, 0")
        a("s_xor_b32 s45, s45, 0x10000\ns_xor_b32 s46, s46, 0x10000")
    FS=(MT+NT)*4
    def reads(ks,st):
        r=[]
        for nt in range(NT):
            for h in range(2): r.append(f"ds_read_b64_tr_b16 {vr(vF+st*FS+MT*4+nt*4+2*h,2)}, v{vWR+nt} offset:{(16*ks+4*h)*RB}")
        for mt in range(MT): r.append(f"ds_read_b128 {vr(vF+st*FS+mt*4)}, v{vXR+ks} offset:{mt*4096}")
        return r
    def mfmas(st,first=False):
        r=[]
        for mt in range(MT):
            for nt in range(NT):
                d=ar(accbase+(mt*NT+nt)*16,16); x=vr(vF+st*FS+mt*4); w=vr(vF+st*FS+MT*4+nt*4)
                c='0' if first else d
                r.append(f"v_mfma_f32_32x32x16_bf16 {d}, {x}, {w}, {c}" if swap else f"v_mfma_f32_32x32x16_bf16 {d}, {w}, {x}, {c}")
        return r
    def inter(m,o):
        k=0
        for i,x in enumerate(m):
            a(x)
            n=(len(o)*(i+1)+len(m)-1)//len(m)
            while k<n: a(o[k]); k+=1
    tog=[f"v_xor_b32 v{vXR+k}, 0x10000, v{vXR+k}" for k in range(4)]+[f"v_xor_b32 v{vWR+n}, 0x10000, v{vWR+n}" for n in range(NT)]
    a("s_barrier")
    dma(); dma()
    a(f"s_waitcnt vmcnt({XI+WI})\ns_barrier")
    for x in reads(0,0): a(x)
    def kstep(first,mode):
        for ks in range(3):
            a("s_waitcnt lgkmcnt(0)")
            inter(mfmas(ks%2,first and ks==0),reads(ks+1,(ks+1)%2))
        a("s_waitcnt lgkmcnt(0)")
        if mode!='last':
            a("s_waitcnt vmcnt(0)\ns_barrier")
            for x in tog: a(x)
            for x in reads(0,0): a(x)
            if mode=='dma': dma()
        for x in mfmas(1): a(x)
    kstep(True,'dma')
    L=a.lab('G')
    a(f"s_mov_b32 s47, {KS-3}\n{L}:")
    kstep(False,'dma')
    a(f"s_sub_u32 s47, s47, 1\ns_cmp_lg_u32 s47, 0\ns_cbranch_scc1 {L}")
    kstep(False,'nodma')
    kstep(False,'last')
    a.nop(12)
    return MT,NT
```

```python
from common import *
from gemm import gemm
LANE=0
def pack8(a,dst,src,acc=True,mul=None,tmp=None):
    if acc:
        for i in range(8): a(f"v_accvgpr_read_b32 v{tmp+i}, a{src+i}")
        src=tmp
    if mul is not None:
        for i in range(8): a(f"v_mul_f32 v{tmp+i}, v{mul}, v{src+i}")
        src=tmp
    for i in range(4): a(f"v_cvt_pk_bf16_f32 v{dst+i}, v{src+2*i}, v{src+2*i+1}")
def gemm1(a):
    a("s_mov_b32 s52, 0\nL_G1:")
    a(f"""s_cmp_eq_u32 s52, 2
    s_cbranch_scc1 L_G1Q
    s_lshr_b32 s53, s51, 3
    s_lshl_b32 s39, s52, 2
    s_add_u32 s53, s53, s39
    s_and_b32 s54, s51, 7
    s_lshl_b32 s39, s50, 3
    s_add_u32 s54, s54, s39
    s_and_b32 s55, s54, 15
    s_mov_b32 s60, {KF}
    s_cmp_ge_u32 s54, 16
    s_cselect_b64 s[58:59], {sp(sWV)}, {sp(sWK)}
    s_cselect_b32 s60, {VF}, s60
    s_cselect_b32 s61, 1, 0
    s_mov_b32 s62, {D_KV}
    s_branch L_G1C
    L_G1Q:
    s_lshr_b32 s53, s51, 2
    s_and_b32 s55, s51, 3
    s_lshl_b32 s39, s50, 2
    s_add_u32 s55, s55, s39
    s_mov_b64 s[58:59], {sp(sWQ)}
    s_mov_b32 s60, {QF}
    s_mov_b32 s61, 0
    s_mov_b32 s62, {D_Q}
    L_G1C:
    s_lshl_b32 s39, s55, 9
    s_add_u32 s58, s58, s39
    s_addc_u32 s59, s59, 0
    s_lshl_b32 s39, s53, 19""")
    base(a,56,sX,soff=39)
    a("s_cmp_eq_u32 s61, 1\ns_cbranch_scc1 L_G1V")
    gemm(a,256,256,2,0,8192,56,58,LANE)
    a("s_branch L_G1E\nL_G1V:")
    gemm(a,256,256,2,1,8192,56,58,LANE)
    a("L_G1E:")
    a(f"""s_lshl_b32 s43, s53, 3
    s_lshl_b32 s39, s41, 2
    s_add_u32 s43, s43, s39
    s_lshl_b32 s43, s43, 18
    s_lshl_b32 s39, s55, 14
    s_add_u32 s43, s43, s39
    s_lshl_b32 s39, s42, 12
    s_add_u32 s43, s43, s39
    s_add_u32 s43, s43, s60""")
    base(a,56,sWS,soff=43)
    a(f"v_lshlrev_b32 v2, 4, v{LANE}")
    k=0
    for mt in range(4):
        for nt in range(2):
            for t in range(2):
                d=16+4*(k%4); k+=1
                pack8(a,d,(mt*2+nt)*16+8*t,tmp=8)
                a(f"global_store_dwordx4 v2, {vr(d)}, s[56:57] offset:{(2*nt+t)*1024} sc1")
        if mt<3: a("s_add_u32 s56, s56, 0x40000\ns_addc_u32 s57, s57, 0")
    a("s_lshl_b32 s53, s53, 2\ns_add_u32 s53, s53, s62")
    signal(a,0,2,soff=53)
    a("s_add_u32 s52, s52, 1\ns_cmp_lt_u32 s52, 3\ns_cbranch_scc1 L_G1")
def red8_write(a,src,vaddr,buf,acc=False):
    for b in range(4): a(f"ds_write_b128 v{vaddr}, {(ar if acc else vr)(src+4*b)} offset:{buf+b*1024}")
def kvb_gate(a):
    a(f"""s_lshr_b32 s53, s{sROLE}, 1
    s_and_b32 s54, s{sROLE}, 1
    s_cmp_eq_u32 s54, 1
    s_cselect_b64 s[58:59], {sp(sBWV)}, {sp(sBWK)}
    s_lshl_b32 s39, s{sWAVE}, 13
    s_add_u32 s58, s58, s39
    s_addc_u32 s59, s59, 0
    s_lshl_b32 s55, s{sWAVE}, 13""")
    slab_dma(a,58,64,128,55,2,LANE)
    a(f"""s_lshl_b32 s39, s53, 16
    s_lshl_b32 s43, s{sWAVE}, 8
    s_add_u32 s39, s39, s43""")
    base(a,56,sX,soff=39)
    a(f"""v_and_b32 v6, 31, v{LANE}
    v_lshrrev_b32 v7, 5, v{LANE}
    v_lshlrev_b32 v7, 4, v7
    v_lshl_add_u32 v6, v6, 11, v7""")
    for ks in range(8): a(f"global_load_dwordx4 {vr(32+4*ks)}, v6, s[56:57] offset:{32*ks}")
    a(f"""s_lshl_b32 s39, s{sROLE}, 15
    s_lshl_b32 s43, s{sWAVE}, 12
    s_add_u32 s39, s39, s43""")
    base(a,56,sX,soff=39)
    a(f"v_lshlrev_b32 v8, 6, v{LANE}\nv_and_b32 v9, 0x7ff, v8")
    for i in range(4): a(f"global_load_dwordx4 {vr(64+4*i)}, v8, s[56:57] offset:{16*i}\nglobal_load_dwordx4 {vr(80+4*i)}, v9, {sp(sGW)} offset:{16*i}")
    a(f"""v_bfe_u32 v10, v{LANE}, 2, 2
    v_lshrrev_b32 v11, 5, v{LANE}
    v_lshl_add_u32 v10, v11, 3, v10
    v_lshlrev_b32 v10, 6, v10
    v_bfe_u32 v11, v{LANE}, 4, 1
    v_lshl_add_u32 v10, v11, 5, v10
    v_and_b32 v11, 3, v{LANE}
    v_lshl_add_u32 v10, v11, 3, v10
    v_add_u32 v10, s55, v10
    s_waitcnt vmcnt(8)""")
    for ks in range(8):
        for h in range(2): a(f"ds_read_b64_tr_b16 {ar(4*ks+2*h,2)}, v10 offset:{(16*ks+4*h)*64}")
    a("s_waitcnt lgkmcnt(0)\ns_cmp_eq_u32 s54, 1\ns_cbranch_scc1 L_KVB_V")
    for ks in range(8): a(f"v_mfma_f32_32x32x16_bf16 v[16:31], {ar(4*ks)}, {vr(32+4*ks)}, {'0' if ks==0 else 'v[16:31]'}")
    a("s_branch L_KVB_E\nL_KVB_V:")
    for ks in range(8): a(f"v_mfma_f32_32x32x16_bf16 v[16:31], {vr(32+4*ks)}, {ar(4*ks)}, {'0' if ks==0 else 'v[16:31]'}")
    a("L_KVB_E:\ns_waitcnt vmcnt(0)\nv_mov_b32 v12, 0")
    for i in range(16):
        a(f"""v_lshlrev_b32 v13, 16, v{64+i}
        v_lshlrev_b32 v14, 16, v{80+i}
        v_fmac_f32 v12, v13, v14
        v_and_b32 v13, 0xffff0000, v{64+i}
        v_and_b32 v14, 0xffff0000, v{80+i}
        v_fmac_f32 v12, v13, v14""")
    for x in (1,2,4,8,16):
        a(f"ds_swizzle_b32 v13, v12 offset:{(x<<10)|0x1f}\ns_waitcnt lgkmcnt(0)\nv_add_f32 v12, v12, v13")
    a(f"""v_mul_f32 v12, 0xbfb8aa3b, v12
    v_exp_f32 v12, v12
    s_nop 0
    v_add_f32 v12, 1.0, v12
    v_rcp_f32 v12, v12
    s_lshl_b32 s39, s{sROLE}, 6
    s_lshl_b32 s43, s{sWAVE}, 3
    s_add_u32 s39, s39, s43
    s_add_u32 s39, s39, {GATE}
    v_lshrrev_b32 v13, 5, v{LANE}
    v_lshl_add_u32 v13, v13, 2, s39
    s_mov_b32 exec_lo, 1
    s_mov_b32 exec_hi, 1
    global_store_dword v13, v12, {sp(sWS)} sc1
    s_mov_b64 exec, -1
    s_lshl_b32 s39, s{sWAVE}, 12
    v_lshl_add_u32 v11, v{LANE}, 4, s39
    v_add_u32 v11, 0x10000, v11""")
    red8_write(a,16,11,0)
    a(f"""s_waitcnt lgkmcnt(0)
    s_barrier
    s_cmp_ge_u32 s{sWAVE}, 2
    s_cbranch_scc1 L_KVB_D
    s_lshl_b32 s39, s{sWAVE}, 11
    v_lshl_add_u32 v11, v{LANE}, 4, s39
    v_add_u32 v11, 0x10000, v11""")
    for w in range(8): a(f"ds_read_b128 {vr(32+8*w)}, v11 offset:{w*4096}\nds_read_b128 {vr(36+8*w)}, v11 offset:{w*4096+1024}")
    a("s_waitcnt lgkmcnt(0)")
    for w in range(1,8):
        for i in range(8): a(f"v_add_f32 v{32+i}, v{32+i}, v{32+8*w+i}")
    pack8(a,16,32,acc=False)
    a(f"""s_lshl_b32 s39, s54, 17
    s_lshl_b32 s43, s53, 11
    s_add_u32 s39, s39, s43
    s_lshl_b32 s43, s{sWAVE}, 10
    s_add_u32 s39, s39, s43
    s_add_u32 s39, s39, {KBF}
    v_lshl_add_u32 v11, v{LANE}, 4, s39
    global_store_dwordx4 v11, v[16:19], {sp(sWS)} sc1
    L_KVB_D:""")
    signal(a,D_KVB,2)
```

```python
from common import *
from gemm import gemm
from worker1 import pack8, red8_write, LANE
import math,struct
def fbits(x): return hex(struct.unpack('<I',struct.pack('<f',x))[0])
def xhalf(a,op,v,t):
    a(f"v_mov_b32 v{t}, v{v}\ns_nop 1\nv_permlane32_swap_b32 v{t}, v{v}\ns_nop 1\n{op} v{v}, v{v}, v{t}")
def maxn(a,dst,regs):
    regs=list(regs)
    a(f"v_max3_f32 v{dst}, v{regs[0]}, v{regs[1]}, v{regs[2]}"); k=3
    while k+1<len(regs): a(f"v_max3_f32 v{dst}, v{dst}, v{regs[k]}, v{regs[k+1]}"); k+=2
    if k<len(regs): a(f"v_max_f32 v{dst}, v{dst}, v{regs[k]}")
def battn(a):
    a(f"""s_lshr_b32 s53, s51, 3
    s_lshl_b32 s39, s50, 2
    s_add_u32 s53, s53, s39
    s_and_b32 s54, s51, 7
    s_lshl_b32 s39, s53, 18""")
    base(a,56,sX,soff=39)
    a("s_lshl_b32 s39, s54, 8"); base(a,58,sBWQ,soff=39)
    gemm(a,128,128,4,0,2048,56,58,LANE)
    aO,aQ,aK,aV=32,64,80,96; S,NM=32,96
    a(f"v_mov_b32 v2, {fbits(32**-0.5*math.log2(math.e))}")
    for h in range(2):
        for t in range(2):
            pack8(a,16,h*16+8*t,mul=2,tmp=8)
            for i in range(4): a(f"v_accvgpr_write_b32 a{aQ+h*8+t*4+i}, v{16+i}")
    for i in range(32): a(f"v_accvgpr_write_b32 a{aO+i}, 0")
    wait_wg(a,D_KVB,128,2)
    a(f"""s_lshl_b32 s39, s{sWAVE}, 12
    v_lshl_add_u32 v2, v{LANE}, 4, s39
    v_lshlrev_b32 v3, 4, v{LANE}
    s_mov_b32 s45, s39
    v_mov_b32 v4, 0
    v_mov_b32 v5, 0
    v_mov_b32 v6, 0
    v_mov_b32 v7, 0""")
    base(a,56,sWS,KBF); base(a,58,sWS,VBF)
    def dma():
        a("s_mov_b32 m0, s45\ns_nop 0")
        for i in range(4): a(f"global_load_lds_dwordx4 v2, s[56:57] offset:{i*1024} sc1")
        a("s_add_u32 m0, m0, 0x8000\ns_nop 0")
        for i in range(4): a(f"global_load_lds_dwordx4 v2, s[58:59] offset:{i*1024} sc1")
        a("s_add_u32 s56, s56, 0x8000\ns_addc_u32 s57, s57, 0\ns_add_u32 s58, s58, 0x8000\ns_addc_u32 s59, s59, 0\ns_xor_b32 s45, s45, 0x10000")
    def rdK():
        for k in range(4): a(f"ds_read_b128 {ar(aK+4*k)}, v3 offset:{k*1024}")
    def rdV():
        for k in range(4): a(f"ds_read_b128 {ar(aV+4*k)}, v3 offset:{0x8000+k*1024}")
    def smm(h,zero=False):
        for tl in range(2):
            d=vr(S+h*32+tl*16,16)
            a(f"v_mfma_f32_32x32x16_bf16 {d}, {ar(aK+tl*8)}, {ar(aQ+h*8)}, {'0' if zero else vr(NM+h*16,16)}")
            a(f"v_mfma_f32_32x32x16_bf16 {d}, {ar(aK+tl*8+4)}, {ar(aQ+h*8+4)}, {d}")
    dma(); dma()
    a("s_waitcnt vmcnt(8)\ns_barrier"); rdK(); a("s_waitcnt lgkmcnt(0)")
    smm(0,True); smm(1,True); a.nop(12)
    for h in range(2):
        maxn(a,8,range(S+h*32,S+h*32+32)); xhalf(a,"v_max_f32",8,9)
        for i in range(16): a(f"v_sub_f32 v{NM+h*16+i}, 0, v8")
    a("s_mov_b32 s60, 0\ns_mov_b32 s62, 0x41000000\nL_BA_C:\ns_mov_b32 s61, 0\nL_BA_I:")
    rdV(); a("s_waitcnt lgkmcnt(4)")
    smm(0); smm(1)
    a("v_add_u32 v3, 0x1000, v3")
    for h in range(2):
        b=S+h*32
        if h==0: a.nop(8)
        maxn(a,8,range(b,b+32))
        a(f"v_cmp_lt_f32 vcc, s62, v8\ns_nop 1\ns_cbranch_vccnz L_BA_R{h}\nL_BA_B{h}:")
        for i in range(32):
            a(f"v_exp_f32 v{b+i}, v{b+i}")
            if i>=2: a(f"v_add_f32 v{4+2*h+(i&1)}, v{4+2*h+(i&1)}, v{b+i-2}")
        a(f"v_add_f32 v{4+2*h}, v{4+2*h}, v{b+30}\nv_add_f32 v{5+2*h}, v{5+2*h}, v{b+31}")
        for i in range(16): a(f"v_cvt_pk_bf16_f32 v{b+i}, v{b+2*i}, v{b+2*i+1}")
        if h==0:
            a("s_waitcnt lgkmcnt(0)\ns_cmp_eq_u32 s61, 7\ns_cbranch_scc1 L_BA_NK"); rdK(); a("L_BA_NK:")
        a("s_nop 1")
        for k in range(4): a(f"v_mfma_f32_32x32x16_bf16 {ar(aO+h*16,16)}, {ar(aV+4*k)}, {vr(b+4*k)}, {ar(aO+h*16,16)}")
    a(f"""s_add_u32 s61, s61, 1
    s_cmp_lt_u32 s61, 8
    s_cbranch_scc1 L_BA_I
    s_add_u32 s60, s60, 1
    s_cmp_eq_u32 s60, 4
    s_cbranch_scc1 L_BA_E
    s_waitcnt vmcnt(0)
    s_barrier
    v_add_u32 v3, 0x8000, v3
    v_and_b32 v3, 0x1ffff, v3""")
    rdK()
    a("s_cmp_eq_u32 s60, 3\ns_cbranch_scc1 L_BA_C"); dma(); a("s_branch L_BA_C")
    for h in range(2):
        b=S+h*32
        a(f"L_BA_R{h}:"); xhalf(a,"v_max_f32",8,9)
        a("v_max_f32 v8, 0, v8\nv_sub_f32 v9, 0, v8\nv_exp_f32 v9, v9")
        for i in range(32): a(f"v_sub_f32 v{b+i}, v{b+i}, v8")
        a.nop(16)
        for i in range(16): a(f"v_sub_f32 v{NM+h*16+i}, v{NM+h*16+i}, v8")
        a(f"v_mul_f32 v{4+2*h}, v{4+2*h}, v9\nv_mul_f32 v{5+2*h}, v{5+2*h}, v9")
        for i in range(16): a(f"v_accvgpr_read_b32 v10, a{aO+h*16+i}\nv_mul_f32 v10, v10, v9\nv_accvgpr_write_b32 a{aO+h*16+i}, v10")
        a(f"s_branch L_BA_B{h}")
    a(f"""L_BA_E:
    s_lshl_b32 s43, s53, 2
    s_add_u32 s43, s43, s41
    s_lshl_b32 s39, s43, 7
    s_add_u32 s39, s39, {GATE}
    v_and_b32 v8, 31, v{LANE}
    v_lshl_add_u32 v8, v8, 2, s39
    global_load_dword v8, v8, {sp(sWS)} sc1
    s_lshl_b32 s43, s43, 16
    s_lshl_b32 s39, s54, 13
    s_add_u32 s43, s43, s39
    s_lshl_b32 s39, s42, 12
    s_add_u32 s43, s43, s39
    s_add_u32 s43, s43, {OB}
    v_lshl_add_u32 v2, v{LANE}, 4, s43
    v_add_f32 v4, v4, v5
    v_add_f32 v6, v6, v7""")
    xhalf(a,"v_add_f32",4,9); xhalf(a,"v_add_f32",6,9)
    a("v_rcp_f32 v4, v4\nv_rcp_f32 v6, v6\ns_waitcnt vmcnt(0)\nv_sub_f32 v8, 1.0, v8\nv_mul_f32 v4, v4, v8\nv_mul_f32 v6, v6, v8")
    for h in range(2):
        for t in range(2):
            d=32+8*h+4*t
            pack8(a,d,aO+h*16+8*t,mul=4+2*h,tmp=16)
            a(f"global_store_dwordx4 v2, {vr(d)}, {sp(sWS)} offset:{(2*h+t)*1024} sc1")
    a("s_lshr_b32 s53, s53, 1\ns_lshl_b32 s53, s53, 2")
    signal(a,D_OB,2,soff=53)
def final_weights(a):
    a(f"""s_barrier
    s_lshl_b32 s39, s{sWAVE}, 20
    s_lshl_b32 s43, s51, 6
    s_add_u32 s39, s39, s43
    s_lshl_b32 s55, s{sWAVE}, 14
    v_bfe_u32 v10, v{LANE}, 2, 2
    v_lshrrev_b32 v11, 5, v{LANE}
    v_lshl_add_u32 v10, v11, 2, v10
    v_lshlrev_b32 v10, 6, v10
    v_bfe_u32 v11, v{LANE}, 4, 1
    v_lshl_add_u32 v10, v11, 5, v10
    v_and_b32 v11, 3, v{LANE}
    v_lshl_add_u32 v10, v11, 3, v10
    v_add_u32 v11, s55, v10""")
    base(a,58,sWO,soff=39)
    for rnd in range(2):
        slab_dma(a,58,2048,256,55,2,LANE)
        a("s_waitcnt vmcnt(0)")
        for ks in range(16):
            for h in range(2): a(f"ds_read_b64_tr_b16 {ar(rnd*64+4*ks+2*h,2)}, v11 offset:{(16*ks+8*h)*64}")
        a("s_waitcnt lgkmcnt(0)\ns_add_u32 s58, s58, 0x80000\ns_addc_u32 s59, s59, 0")
    a(f"s_barrier\ns_lshl_b32 s39, s{sWAVE}, 18\ns_add_u32 s39, s39, s43\ns_lshl_b32 s55, s{sWAVE}, 13\ns_add_u32 s55, s55, 0x10000\nv_add_u32 v11, s55, v10")
    base(a,58,sBWO,soff=39)
    slab_dma(a,58,2048,128,55,2,LANE)
    a("s_waitcnt vmcnt(0)")
    for ks in range(8):
        for h in range(2): a(f"ds_read_b64_tr_b16 {vr(32+4*ks+2*h,2)}, v11 offset:{(16*ks+8*h)*64}")
    a(f"v_lshl_add_u32 v11, v{LANE}, 4, s55\ns_waitcnt lgkmcnt(0)")
    for ks in range(8): a(f"ds_write_b128 v11, {vr(32+4*ks)} offset:{ks*1024}")
def xattn(a):
    Q,K,M,SX,SM=0+4,36,68,100,36
    a(f"""s_lshl_b32 s39, s64, 18
    s_lshl_b32 s43, s51, 13
    s_add_u32 s65, s39, s43
    s_lshr_b32 s66, s65, 2
    v_lshlrev_b32 v2, 4, v{LANE}
    v_and_b32 v3, 7, v{LANE}
    v_lshlrev_b32 v3, 4, v3
    v_lshrrev_b32 v1, 5, v{LANE}
    v_lshl_add_u32 v3, v1, 7, v3""")
    base(a,56,sWS,QF+4096,soff=65); base(a,58,sWS,KF+4096,soff=65); base(a,60,sWS,KM,soff=66)
    for t in range(8):
        a(f"global_load_dwordx4 {vr(Q+4*t)}, v2, s[56:57] offset:{t*1024-4096} sc1")
        a(f"global_load_dwordx4 {vr(K+4*t)}, v2, s[58:59] offset:{t*1024-4096} sc1")
    for t in range(8): a(f"global_load_dwordx4 {vr(M+4*t)}, v3, s[60:61] offset:{t*256} sc1")
    a(f"""s_lshl_b32 s39, s64, 7
    s_add_u32 s39, s39, {GATE}
    v_and_b32 v116, 31, v{LANE}
    v_lshl_add_u32 v117, v116, 2, s39
    global_load_dword v117, v117, {sp(sWS)} sc1
    v_lshlrev_b32 v118, 2, v1
    v_sub_u32 v118, v116, v118
    v_lshlrev_b32 v119, 3, v1
    v_lshl_add_u32 v119, v116, 4, v119""")
    base(a,56,sWS,VF+4096,soff=65); base(a,58,sWS,VM,soff=66); base(a,60,sWS,OA+4096,soff=65)
    for t in range(8):
        a(f"s_waitcnt vmcnt({9+2*(7-t)})\nv_mfma_f32_32x32x16_bf16 {vr(SX,16)}, {vr(K+4*t)}, {vr(Q+4*t)}, {'0' if t==0 else vr(SX,16)}")
    a("s_waitcnt vmcnt(0)")
    for t in range(8): a(f"v_mfma_f32_32x32x16_bf16 {vr(SM,16)}, {vr(M+4*t)}, {vr(Q+4*t)}, {'0' if t==0 else vr(SM,16)}")
    V=M; W=Q
    a.nop(4)
    for u in range(8): a(f"global_load_dwordx4 {vr(V+4*u)}, v2, s[56:57] offset:{u*1024-4096} sc1")
    for dt in range(4):
        a(f"global_load_dwordx2 {vr(W+4*dt,2)}, v119, s[58:59] offset:{dt*512} sc1")
        a(f"v_mov_b32 v{W+4*dt+2}, 0\nv_mov_b32 v{W+4*dt+3}, 0")
    a("v_mov_b32 v120, 0xff800000")
    for i in range(16): a(f"v_cmp_ge_i32 s[{68+2*(i%8)}:{69+2*(i%8)}], v118, {8*(i//4)+i%4}\n" + (f"v_cndmask_b32 v{SX+i-2}, v120, v{SX+i-2}, s[{68+2*((i-2)%8)}:{69+2*((i-2)%8)}]" if i>=2 else ""))
    a("s_nop 1")
    for i in (14,15): a(f"v_cndmask_b32 v{SX+i}, v120, v{SX+i}, s[{68+2*(i%8)}:{69+2*(i%8)}]")
    vals=list(range(SX,SX+16))+list(range(SM,SM+4))
    maxn(a,121,vals); xhalf(a,"v_max_f32",121,122)
    c=fbits(128**-0.5*math.log2(math.e))
    a(f"s_mov_b32 s39, {c}\nv_mul_f32 v121, s39, v121")
    for r in vals: a(f"v_fma_f32 v{r}, v{r}, s39, -v121")
    for r in vals: a(f"v_exp_f32 v{r}, v{r}")
    a(f"s_nop 0\nv_add_f32 v121, v{vals[0]}, v{vals[1]}")
    for r in vals[2:]: a(f"v_add_f32 v121, v121, v{r}")
    xhalf(a,"v_add_f32",121,122)
    a("v_rcp_f32 v121, v121")
    for i in range(8): a(f"v_cvt_pk_bf16_f32 v{SX+i}, v{SX+2*i}, v{SX+2*i+1}")
    a(f"v_cvt_pk_bf16_f32 v{SX+8}, v{SM}, v{SM+1}\nv_cvt_pk_bf16_f32 v{SX+9}, v{SM+2}, v{SM+3}\nv_mov_b32 v{SX+10}, 0\nv_mov_b32 v{SX+11}, 0\nv_mul_f32 v121, v121, v117\ns_waitcnt vmcnt(0)")
    O=[36,52]
    def pv(dt):
        o=vr(O[dt%2],16)
        a(f"v_mfma_f32_32x32x16_bf16 {o}, {vr(V+8*dt)}, {vr(SX)}, 0\nv_mfma_f32_32x32x16_bf16 {o}, {vr(V+8*dt+4)}, {vr(SX+4)}, {o}\nv_mfma_f32_32x32x16_bf16 {o}, {vr(W+4*dt)}, {vr(SX+8)}, {o}")
    pv(0)
    for dt in range(4):
        if dt<3: pv(dt+1); a.nop(10)
        else: a.nop(12)
        for t in range(2):
            pack8(a,20+4*t,O[dt%2]+8*t,acc=False,mul=121,tmp=28)
            a(f"global_store_dwordx4 v2, {vr(20+4*t)}, s[60:61] offset:{(2*dt+t)*1024-4096} sc1")
        a("s_nop 1")
def final(a):
    final_weights(a)
    a("s_mov_b32 s52, 0\nL_FB:")
    a(f"""s_lshr_b32 s62, 8, s52
    s_max_u32 s62, s62, 1
    s_lshl_b32 s39, s62, 3
    s_sub_u32 s63, 64, s39
    s_cmp_eq_u32 s52, 4
    s_cselect_b32 s63, 60, s63
    s_mul_i32 s39, s62, s50
    s_add_u32 s63, s63, s39
    s_add_u32 s67, s63, s62
    s_cmp_eq_u32 s67, 64
    s_cselect_b32 s67, 191, s67
    s_lshr_b32 s53, s63, 3
    s_lshl_b32 s53, s53, 2
    s_cmp_lg_u32 s{sWAVE}, 0
    s_cbranch_scc1 L_FB_W""")
    wait_ge(a,D_KV,32,2,soff=53); wait_ge(a,D_Q,16,2,soff=53); wait_ge(a,D_OB,16,2,soff=53); wait_ge(a,D_PROG,"s67",2,sleep=2)
    a(f"L_FB_W:\ns_barrier\ns_add_u32 s64, s63, s{sWAVE}\ns_cmp_ge_u32 s{sWAVE}, s62\ns_cbranch_scc1 L_FB_X")
    xattn(a)
    a("L_FB_X:\ns_lshl_b32 s53, s52, 2\ns_add_u32 s53, s53, s50\ns_lshl_b32 s53, s53, 2")
    signal(a,D_XA,2,soff=53)
    wait_wg(a,D_XA,32,2,soff=53,sleep=1)
    B=48; ACC=16
    a(f"""v_lshlrev_b32 v2, 4, v{LANE}
    s_lshl_b32 s39, s{sWAVE}, 13
    v_add_u32 v3, s39, v2
    v_add_u32 v3, 0x10000, v3
    s_lshl_b32 s39, s{sWAVE}, 12
    v_add_u32 v4, s39, v2
    s_lshl_b32 s39, s{sWAVE}, 10
    v_add_u32 v5, s39, v2
    v_and_b32 v6, 31, v{LANE}
    v_lshrrev_b32 v7, 5, v{LANE}
    v_lshlrev_b32 v7, 3, v7
    v_lshl_add_u32 v6, v6, 11, v7
    s_lshl_b32 s39, s{sWAVE}, 4
    s_lshl_b32 s43, s51, 6
    s_add_u32 s39, s39, s43
    v_add_u32 v6, s39, v6""")
    for i in range(1,8): a(f"v_add_u32 v{7+i}, {i*4096}, v2")
    def setb(seg):
        a(f"s_lshl_b32 s39, s{seg}, 18\ns_lshl_b32 s43, s{sWAVE}, 15\ns_add_u32 s39, s39, s43"); base(a,56,sWS,OA,soff=39)
        a("s_lshr_b32 s39, s39, 2"); base(a,58,sWS,OB,soff=39)
    def ld(k,slot):
        kk=k if k<32 else k-32; v=2 if kk<4 else 7+kk//4
        a(f"global_load_dwordx4 {vr(B+4*slot)}, v{v}, s[{56 if k<32 else 58}:{57 if k<32 else 59}] offset:{(kk%4)*1024} sc1")
    setb(63)
    for k in range(16): ld(k,k)
    a("s_mov_b32 s64, 0\nL_FS:")
    for half in range(2):
        for ks in range(4): a(f"ds_read_b128 {vr(32+4*ks)}, v3 offset:{ks*1024}")
        for k in range(40):
            slot=(k+8*half)%16
            if k in (32,36): a("s_waitcnt lgkmcnt(0)")
            w=ar(4*k) if k<32 else vr(32+4*(k%4))
            a(f"s_waitcnt vmcnt(15)\nv_mfma_f32_32x32x16_bf16 {vr(ACC,16)}, {w}, {vr(B+4*slot)}, {'0' if k==0 else vr(ACC,16)}")
            if k==35:
                a("s_nop 3")
                for ks in range(4): a(f"ds_read_b128 {vr(32+4*ks)}, v3 offset:{(4+ks)*1024}")
            if k==24:
                a("s_add_u32 s65, s64, 1\ns_cmp_lt_u32 s65, s62\ns_cselect_b32 s65, s65, s64\ns_add_u32 s65, s65, s63"); setb(65)
            ld((k+16)%40,slot)
        a.nop(12)
        red8_write(a,ACC,4,half*0x8000)
        a(f"s_waitcnt lgkmcnt(0)\ns_barrier\ns_cmp_ge_u32 s{sWAVE}, 4\ns_cbranch_scc1 L_FN{half}")
        for w in range(4): a(f"ds_read_b128 {vr(16+4*w)}, v5 offset:{half*0x8000+w*4096}\nds_read_b128 {vr(112+4*w)}, v5 offset:{half*0x8000+(w+4)*4096}")
        a("s_add_u32 s39, s63, s64\ns_lshl_b32 s39, s39, 16"); base(a,60,sOUT,soff=39)
        a("s_waitcnt lgkmcnt(0)")
        for i in range(16): a(f"v_add_f32 v{16+i}, v{16+i}, v{112+i}")
        for i in range(8): a(f"v_add_f32 v{16+i}, v{16+i}, v{24+i}")
        for i in range(4): a(f"v_add_f32 v{16+i}, v{16+i}, v{20+i}")
        a(f"v_cvt_pk_bf16_f32 v112, v16, v17\nv_cvt_pk_bf16_f32 v113, v18, v19\nglobal_store_dwordx2 v6, v[112:113], s[60:61]\nL_FN{half}:")
        a("s_add_u32 s64, s64, 1\ns_cmp_ge_u32 s64, s62\ns_cbranch_scc1 L_FD" if half==0 else "s_add_u32 s64, s64, 1\ns_cmp_lt_u32 s64, s62\ns_cbranch_scc1 L_FS")
    a("L_FD:\ns_waitcnt vmcnt(0)\ns_add_u32 s52, s52, 1\ns_cmp_lt_u32 s52, 5\ns_cbranch_scc1 L_FB")
```

```python
import sys
from common import *
import worker1,worker2,chain
DIAG=len(sys.argv)>2 and sys.argv[2]=='diag'
a=Asm()
hdr=open(f'cdna_kernels/{NAME}.s.ref').read().split('\n')
hdr=[l for l in hdr if l.startswith(';') and '@launch' not in l and 'Override' not in l and 'grid=ceil' not in l]
a(f"""s_cmp_ge_u32 s2, 256
s_cbranch_scc1 L_END
s_load_dwordx8 s[4:11], s[0:1], 0
s_load_dwordx4 s[12:15], s[0:1], 32
s_load_dwordx8 s[16:23], s[0:1], 64
s_load_dwordx8 s[24:31], s[0:1], 96
s_getreg_b32 s{sXCC}, hwreg(HW_REG_XCC_ID, 0, 3)
v_lshrrev_b32 v1, 6, v0
v_and_b32 v0, 63, v0
v_readfirstlane_b32 s{sWAVE}, v1
s_lshl_b32 s39, s{sXCC}, 2
v_mov_b32 v2, s39
v_mov_b32 v3, 1
v_mov_b32 v4, {D_TOTAL}
v_mov_b32 v8, 0
s_waitcnt lgkmcnt(0)
s_cmp_lg_u32 s{sWAVE}, 0
s_cbranch_scc1 L_S1
s_mov_b64 exec, 1
global_atomic_add v6, v2, v3, {sp(sDBG)} sc0 sc1
s_waitcnt vmcnt(0)
global_atomic_add v7, v4, v3, {sp(sDBG)} sc0 sc1
s_waitcnt vmcnt(0)
ds_write_b64 v8, v[6:7]
s_mov_b64 exec, -1""")
wait_ge(a,D_TOTAL,256,2,sleep=1)
a(f"""v_and_b32 v2, 7, v0
v_lshlrev_b32 v2, 2, v2
global_load_dword v3, v2, {sp(sDBG)} sc1
s_waitcnt vmcnt(0)
v_cmp_ne_u32 vcc, 32, v3
s_nop 1
s_cmp_lg_u64 vcc, 0
s_cselect_b32 s39, 1, 0
v_mov_b32 v3, s39
ds_write_b32 v8, v3 offset:8
s_waitcnt lgkmcnt(0)
L_S1:
s_barrier
ds_read_b96 v[4:6], v8
s_waitcnt lgkmcnt(0)
v_readfirstlane_b32 s{sTK}, v4
v_readfirstlane_b32 s{sG}, v5
v_readfirstlane_b32 s{sSLOW}, v6
s_barrier
s_lshl_b32 s40, s{sXCC}, 5
s_add_u32 s40, s40, s{sTK}
s_cmp_eq_u32 s{sSLOW}, 0
s_cselect_b32 s40, s40, s{sG}
s_and_b32 s40, s40, 255
s_and_b32 s{sROLE}, s40, 127""")
if DIAG: stamp(a,0,2)
a(f"""s_cmp_lt_u32 s40, 128
s_cbranch_scc1 L_CHAIN
s_lshr_b32 s50, s{sROLE}, 5
s_and_b32 s51, s{sROLE}, 31""")
worker1.kvb_gate(a)
if DIAG: stamp(a,1,2)
worker1.gemm1(a)
if DIAG: stamp(a,2,2)
worker2.battn(a)
if DIAG: stamp(a,3,2)
worker2.final(a)
if DIAG: stamp(a,4,2)
a("s_branch L_END\nL_CHAIN:\ns_setprio 3")
chain.chain(a,DIAG)
a("L_END:\ns_endpgm")
out='\n'.join(hdr)+f"""
; @launch grid=(256,1,1) block=(512,1,1) lds=133120
.amdgcn_target "amdgcn-amd-amdhsa--gfx950"
.text
.globl {NAME}_kernel
.p2align 8
.type {NAME}_kernel,@function
{NAME}_kernel:
"""+a.text()+f""".section .rodata,"a"
.p2align 6
.amdhsa_kernel {NAME}_kernel
  .amdhsa_next_free_vgpr 256
  .amdhsa_next_free_sgpr 102
  .amdhsa_accum_offset 128
  .amdhsa_group_segment_fixed_size 0
  .amdhsa_kernarg_size 128
  .amdhsa_user_sgpr_count 2
  .amdhsa_user_sgpr_kernarg_segment_ptr 1
  .amdhsa_system_sgpr_workgroup_id_x 1
.end_amdhsa_kernel
"""
open(sys.argv[1],'w').write(out)
```

```python
from common import *
from worker1 import LANE
from worker2 import fbits, xhalf, maxn
import math
NLO,NHI=0x00ff00ff,0xff00ff00
def st_intra(a,txt):
    L=a.lab('F'); E=a.lab('E')
    a(f"s_cmp_eq_u32 s{sSLOW}, 0\ns_cbranch_scc1 {L}")
    for t in txt: a(t+" sc1")
    a(f"s_branch {E}\n{L}:")
    for t in txt: a(t)
    a(f"{E}:")
import os
DL=[int(x) for x in os.environ.get('DL','2,3,9,3,2').split(',')]
def poll(a,loads,regs,vt,dl=0):
    L=a.lab('P')
    if dl: a(f's_sleep {dl}')
    a(f"s_mov_b32 s{sSPIN}, {SPINMAX}\n{L}:")
    spin_check(a)
    for t in loads: a(t+" sc1")
    a("s_waitcnt vmcnt(0)")
    regs=list(regs); h=len(regs)//2
    for t,rs in ((vt,regs[:h]),(vt+1,regs[h:])):
        a(f"v_max3_u32 v{t}, v{rs[0]}, v{rs[1]}, v{rs[2]}")
    for k in range(3,h,2):
        for t,rs in ((vt,regs[:h]),(vt+1,regs[h:])):
            a(f"v_max3_u32 v{t}, v{t}, v{rs[k]}, v{rs[k+1]}" if k+1<h else f"v_max_u32 v{t}, v{t}, v{rs[k]}")
    a(f"v_max_u32 v{vt}, v{vt}, v{vt+1}\nv_cmp_eq_u32 vcc, -1, v{vt}\ns_nop 0\ns_cbranch_vccnz {L}")
def slotbase(a,d,add,off,extra):
    a(f"s_add_u32 s39, s60, {add}\ns_and_b32 s39, s39, 3\ns_lshl_b32 s39, s39, 19\ns_add_u32 s39, s39, s{extra}")
    base(a,d,sWS,MBOX+off,soff=39)
TS2=85*MB
def cst(a,D,k):
    if D>1: a(f"s_memrealtime s[{80+2*k}:{81+2*k}]")
def cdump(a,D,vt):
    if D<2: return
    a(f"s_lshl_b32 s39, s{sROLE}, 3\ns_add_u32 s39, s39, s{sWAVE}\ns_lshl_b32 s39, s39, 6\ns_add_u32 s39, s39, s60\ns_lshl_b32 s39, s39, 5\ns_add_u32 s39, s39, {TS2}\ns_waitcnt lgkmcnt(0)")
    for h in range(2):
        for i in range(4): a(f"v_mov_b32 v{vt+i}, s{80+2*(4*h+i) if 4*h+i<7 else 80}")
        a(f"v_mov_b32 v{vt+4}, s39\ns_mov_b64 exec, 1\nglobal_store_dwordx4 v{vt+4}, {vr(vt)}, {sp(sWS)} offset:{16*h}\ns_mov_b64 exec, -1\ns_nop 1")
def dpp(op,d,s0,s1,ctl,bank=0xf,bc=False):
    return f"{op}_dpp v{d}, v{s0}" + (f", v{s1}" if s1 is not None else "") + f" {ctl} row_mask:0xf bank_mask:{hex(bank)}" + (" bound_ctrl:0" if bc else "")
def merge4(a,E0,O0,E1,O1):
    for i in range(4): a(dpp("v_add_f32",E0+i,O0+i,E0+i,"row_shl:8",0x3))
    for i in range(4): a(dpp("v_add_f32",E0+i,E1+i,O1+i,"row_shr:8",0xc))
def pkadd(a,d,x,y,n):
    for i in range(0,n,2): a(f"v_pk_add_f32 {vr(d+i,2)}, {vr(x+i,2)}, {vr(y+i,2)}")
def chain(a,DIAG):
    a(f"""s_lshr_b32 s50, s{sROLE}, 5
    s_and_b32 s51, s{sROLE}, 31
    s_lshl_b32 s55, s{sWAVE}, 14
    s_lshl_b32 s70, s{sROLE}, 11
    s_lshl_b32 s71, s{sROLE}, 9
    s_lshl_b32 s72, s{sROLE}, 10
    s_lshl_b32 s73, s50, 14
    s_mov_b32 s74, {NLO}
    s_mov_b32 s75, {NLO}
    s_mov_b32 s76, {NHI}
    s_mov_b32 s77, {NHI}
    s_mov_b32 s78, 0
    s_mov_b32 s79, -1
    s_mov_b32 s60, 0
    v_bfe_u32 v58, v{LANE}, 2, 2
    v_lshrrev_b32 v59, 4, v{LANE}
    v_lshl_add_u32 v58, v59, 2, v58
    v_lshlrev_b32 v58, 6, v58
    v_add_u32 v58, s55, v58
    v_and_b32 v60, 3, v{LANE}
    v_lshl_add_u32 v61, v60, 3, v58
    v_and_b32 v60, 1, v{LANE}
    v_lshl_add_u32 v58, v60, 3, v58
    v_bfe_u32 v60, v{LANE}, 1, 1
    v_lshl_add_u32 v58, v60, 5, v58
    v_and_b32 v60, 7, v{LANE}
    v_lshlrev_b32 v60, 4, v60
    v_lshl_add_u32 v55, v59, 7, v60
    v_bfe_u32 v62, v{LANE}, 3, 1
    v_lshl_add_u32 v56, v62, 9, v55
    s_and_b32 s54, s{sWAVE}, 3
    s_lshl_b32 s39, s54, 12
    v_add_u32 v56, s39, v56
    s_cmp_ge_u32 s{sWAVE}, 4
    s_cbranch_scc1 L_C_B""")
    def W(tile,ks):
        i=(tile*8+ks)*4
        return ('a',i) if i<128 else ('v',i-64)
    a(f"s_lshl_b32 s39, s{sWAVE}, 21\ns_lshl_b32 s43, s{sROLE}, 6\ns_add_u32 s43, s43, s39")
    for m,sw in enumerate((sWQ,sWK,sWV)):
        base(a,56,sw,soff=43)
        slab_dma(a,56,8192,256,55,2,LANE)
        a("s_waitcnt vmcnt(0)")
        for T in range(2):
            for ks in range(8):
                k,r=W(2*m+T,ks)
                for h in range(2):
                    a(f"ds_read_b64_tr_b16 {k}[{r+2*h}:{r+2*h+1}], v{58 if m<2 else 61} offset:{(32*ks+16*h)*64+(16 if m<2 else 32)*T}")
        a("s_waitcnt lgkmcnt(0)")
    a(f"""v_and_b32 v60, 7, v{LANE}
    v_lshlrev_b32 v60, 11, v60
    v_lshl_add_u32 v60, v59, 3, v60
    v_lshl_add_u32 v63, v62, 6, v60
    s_lshl_b32 s39, s{sWAVE}, 9""")
    base(a,56,sMEM0,soff=39)
    a(f"s_mul_i32 s39, s{sWAVE}, 3072\nv_lshl_add_u32 v57, v{LANE}, 4, s39\ns_barrier\ns_barrier")
    for i in range(4): a(f"global_load_dwordx2 {vr(4*i,2)}, v63, s[56:57] offset:{128*i}\nglobal_load_dwordx2 {vr(4*i+2,2)}, v63, s[56:57] offset:{128*i+32}")
    a("s_waitcnt vmcnt(0)\ns_branch L_CQ_M\nL_CQ:")
    poll(a,[f"global_load_dwordx4 {vr(4*i)}, v56, s[56:57] offset:{1024*i}" for i in range(4)],range(16),58,DL[3])
    a("L_CQ_M:"); cst(a,DIAG,0)
    def mm(tiles):
        for ks in range(8):
            for tile in tiles:
                k,r=W(tile,ks); w=f"{k}[{r}:{r+3}]"; d=vr(16+8*(tile%4)+4*(ks%2)); c='0' if ks<2 else d; b=vr(4*(ks//2))
                a(f"v_mfma_f32_16x16x32_bf16 {d}, {w}, {b}, {c}" if tile<4 else f"v_mfma_f32_16x16x32_bf16 {d}, {b}, {w}, {c}")
    mm(range(4)); a.nop(6)
    merge4(a,16,20,24,28); a("ds_write_b128 v57, v[16:19]")
    merge4(a,32,36,40,44); a("ds_write_b128 v57, v[32:35] offset:1024")
    cst(a,DIAG,1)
    a("s_waitcnt lgkmcnt(0)\ns_barrier")
    mm((4,5)); a.nop(8)
    for i in range(4): a(f"v_permlane32_swap_b32 v{20+i}, v{24+i}")
    for i in range(4): a(f"v_cndmask_b32 v{16+i}, v{16+i}, v{28+i}, s[78:79]")
    for i in range(4): a(f"v_cndmask_b32 v{24+i}, v{24+i}, v{20+i}, s[78:79]")
    pkadd(a,16,16,24,4)
    a("ds_write_b128 v57, v[16:19] offset:2048\ns_waitcnt lgkmcnt(0)\ns_barrier\ns_cmp_eq_u32 s60, 63\ns_cbranch_scc1 L_END"); cdump(a,DIAG,32)
    a("s_add_u32 s60, s60, 1"); slotbase(a,56,0,MM_O,73)
    a("s_barrier\ns_barrier\ns_barrier\ns_branch L_CQ")
    a(f"""L_C_B:
    s_lshl_b32 s39, s50, 21
    s_lshl_b32 s43, s54, 19
    s_add_u32 s39, s39, s43
    s_lshl_b32 s43, s51, 6
    s_add_u32 s39, s39, s43""")
    base(a,56,sWO,soff=39)
    slab_dma(a,56,2048,256,55,2,LANE)
    a(f"v_lshlrev_b32 v1, 4, v{LANE}\nv_mov_b32 v4, -1\nv_mov_b32 v5, -1\nv_mov_b32 v6, -1\nv_mov_b32 v7, -1\nv_and_b32 v2, 0x1ff, v1\ns_mov_b32 s60, s54")
    slotbase(a,56,0,SC_O,70); a("global_store_dwordx4 v1, v[4:7], s[56:57] sc1\nglobal_store_dwordx4 v2, v[4:7], s[56:57] offset:1024 sc1")
    slotbase(a,56,0,OM_O,71); a("global_store_dwordx4 v2, v[4:7], s[56:57] sc1")
    slotbase(a,56,0,PM_O,72); a("global_store_dwordx4 v1, v[4:7], s[56:57] sc1")
    slotbase(a,56,0,MM_O,71); a("global_store_dwordx4 v2, v[4:7], s[56:57] sc1\ns_mov_b32 s60, 0\ns_waitcnt vmcnt(0)")
    for T in range(2):
        for ks in range(8):
            for h in range(2): a(f"ds_read_b64_tr_b16 {ar((T*8+ks)*4+2*h,2)}, v61 offset:{(32*ks+16*h)*64+32*T}")
    a(f"""s_waitcnt lgkmcnt(0)
    v_mov_b32 v8, v55
    v_mov_b32 v9, v56
    s_lshl_b32 s39, s54, 10
    s_add_u32 s39, s39, 0x4000
    v_add_u32 v10, s39, v1
    v_lshrrev_b32 v13, 5, v{LANE}
    v_lshlrev_b32 v13, 10, v13
    v_bfe_u32 v14, v{LANE}, 4, 1
    v_lshl_add_u32 v13, v14, 9, v13
    v_and_b32 v14, 7, v{LANE}
    v_lshl_add_u32 v14, v62, 4, v14
    v_lshl_add_u32 v11, v14, 4, v13
    v_and_b32 v14, 15, v{LANE}
    v_lshl_add_u32 v12, v14, 4, v13
    v_lshlrev_b32 v14, 4, v14
    v_bfe_u32 v13, v{LANE}, 4, 1
    v_lshl_add_u32 v13, v13, 3, v14
    v_lshrrev_b32 v14, 5, v{LANE}
    v_lshl_add_u32 v13, v14, 8, v13
    v_lshl_add_u32 v14, v62, 3, v55
    v_lshlrev_b32 v15, 3, v{LANE}
    v_mov_b32 v3, 0xff800000
    s_barrier
    s_cmp_lg_u32 s54, 0
    s_cbranch_scc1 L_C_I""")
    add1(a,D_CINIT,16); wait_ge(a,D_CINIT,128,16,sleep=1)
    KX,VX=64,72
    def prefetch():
        S=a.lab('K')
        a(f"s_and_b32 s39, s61, 7\ns_cmp_lg_u32 s39, 0\ns_cbranch_scc1 {S}\ns_lshr_b32 s62, s61, 1")
        wait_ge(a,D_KV,128,16,sleep=1,soff=62)
        a(f"{S}:\ns_lshl_b32 s39, s61, 18\ns_add_u32 s43, s70, s39")
        base(a,56,sWS,KF,soff=43); base(a,58,sWS,VF,soff=43)
        a(f"""global_load_dwordx4 {vr(KX)}, v11, s[56:57] sc1
        global_load_dwordx4 {vr(KX+4)}, v11, s[56:57] offset:128 sc1
        global_load_dwordx4 {vr(VX)}, v12, s[58:59] sc1
        global_load_dwordx4 {vr(VX+4)}, v12, s[58:59] offset:256 sc1""")
    def abases(add):
        slotbase(a,56,add,SC_O,70); slotbase(a,58,add,OM_O,71)
        for p in range(1,4):
            a(f"s_xor_b32 s43, s{sROLE}, {p}\ns_lshl_b32 s43, s43, 11"); slotbase(a,62+2*p,add,SC_O,43)
    a("s_mov_b32 s61, 0"); prefetch()
    a("L_C_I:"); abases(0); a("s_barrier")
    if DIAG: stamp(a,1,16,4)
    def rdqk(which):
        for kq in range(4):
            for p in which: a(f"ds_read_b128 {vr(16+8*kq+4*p)}, v1 offset:{kq*3072+1024*p}")
    def rdv():
        for kq in range(4): a(f"ds_read_b128 {vr(48+4*kq)}, v1 offset:{kq*3072+2048}")
        a("s_waitcnt lgkmcnt(0)"); pkadd(a,48,48,52,4); pkadd(a,56,56,60,4); pkadd(a,48,48,56,4)
        a("v_cvt_pk_bf16_f32 v44, v48, v49\nv_cvt_pk_bf16_f32 v45, v50, v51")
    a("L_CW:\ns_barrier\ns_cmp_eq_u32 s54, 0\ns_cbranch_scc1 L_CW_A\ns_cmp_eq_u32 s54, 2\ns_cbranch_scc1 L_CW_K\ns_barrier\ns_branch L_CW_O\nL_CW_K:")
    rdqk((1,))
    a("s_lshl_b32 s39, s60, 16\ns_add_u32 s43, s39, s71"); base(a,64,sWS,KM,soff=43); base(a,66,sWS,VM,soff=43)
    a("s_waitcnt lgkmcnt(0)"); pkadd(a,20,20,28,4); pkadd(a,36,36,44,4); pkadd(a,20,20,36,4)
    a("v_cvt_pk_bf16_f32 v28, v20, v21\nv_cvt_pk_bf16_f32 v29, v22, v23\nv_mov_b32 v40, v28\nv_mov_b32 v41, v29\ns_barrier")
    rdv()
    a("s_cmp_eq_u32 s60, 63\ns_cbranch_scc1 L_CA_F\ns_branch L_CW_O\nL_CW_A:")
    rdqk((0,1))
    a("s_cmp_eq_u32 s60, 63\ns_cbranch_scc1 L_CA_X\ns_waitcnt lgkmcnt(4)"); pkadd(a,16,16,24,8)
    a("s_waitcnt lgkmcnt(0)"); pkadd(a,32,32,40,8); pkadd(a,16,16,32,8)
    a("""v_cvt_pk_bf16_f32 v24, v16, v17
    v_cvt_pk_bf16_f32 v25, v18, v19
    v_cvt_pk_bf16_f32 v26, v16, v17
    v_cvt_pk_bf16_f32 v27, v18, v19
    v_cvt_pk_bf16_f32 v28, v20, v21
    v_cvt_pk_bf16_f32 v29, v22, v23""")
    a(dpp("v_mov_b32",26,24,None,"row_shl:8",0x3)); a(dpp("v_mov_b32",27,25,None,"row_shl:8",0x3))
    a(dpp("v_mov_b32",24,24,None,"row_shr:8",0xc)); a(dpp("v_mov_b32",25,25,None,"row_shr:8",0xc))
    a(dpp("v_mov_b32",30,28,None,"row_shl:8",bc=True)); a(dpp("v_mov_b32",31,29,None,"row_shl:8",bc=True))
    a(f"""s_waitcnt vmcnt(0)
    v_mfma_f32_16x16x32_bf16 v[36:39], {vr(KX)}, v[24:27], 0
    v_mfma_f32_16x16x32_bf16 v[40:43], {vr(KX+4)}, v[24:27], 0
    v_mfma_f32_16x16x32_bf16 v[32:35], v[28:31], v[24:27], 0
    s_nop 6""")
    for i in range(4): a(f"v_cndmask_b32 v{36+i}, v{36+i}, v{40+i}, s[76:77]")
    for i in range(2): a(f"v_cndmask_b32 v{40+i}, v{32+i}, v{34+i}, s[76:77]")
    st_intra(a,["global_store_dwordx4 v1, v[36:39], s[56:57]","global_store_dwordx2 v15, v[40:41], s[56:57] offset:1024"])
    cst(a,DIAG,0)
    a("s_barrier"); rdv()
    a("""v_mov_b32 v46, v44
    v_mov_b32 v47, v45
    v_mov_b32 v48, v44
    v_mov_b32 v49, v45
    s_nop 1
    v_permlane32_swap_b32 v46, v48
    v_permlane32_swap_b32 v47, v49""")
    L=[]
    for p in range(3): L+= [f"global_load_dwordx4 {vr(80+6*p)}, v1, s[{64+2*p}:{65+2*p}]",f"global_load_dwordx2 {vr(84+6*p,2)}, v15, s[{64+2*p}:{65+2*p}] offset:1024"]
    poll(a,L,range(80,98),16,DL[0])
    cst(a,DIAG,1)
    pkadd(a,36,36,80,6); pkadd(a,86,86,92,6); pkadd(a,36,36,86,6)
    a("v_cndmask_b32 v40, v40, v3, s[78:79]\nv_cndmask_b32 v41, v41, v3, s[78:79]")
    def x8(op,v):
        a(f"v_mov_b32 v17, v{v}\ns_nop 1\nv_permlane32_swap_b32 v17, v{v}\ns_nop 0\n{op} v{v}, v{v}, v17\nv_mov_b32 v17, v{v}\ns_nop 1\nv_permlane16_swap_b32 v17, v{v}\ns_nop 0\n{op} v{v}, v{v}, v17\ns_nop 1")
        a(dpp(op,v,v,v,"row_ror:8"))
    a("v_max3_f32 v16, v36, v37, v38\nv_max3_f32 v18, v39, v40, v41\nv_max_f32 v16, v16, v18"); x8("v_max_f32",16)
    a(f"s_mov_b32 s39, {fbits(128**-0.5*math.log2(math.e))}\nv_mul_f32 v16, s39, v16")
    for i in range(6): a(f"v_fma_f32 v{36+i}, v{36+i}, s39, -v16")
    for i in range(6): a(f"v_exp_f32 v{36+i}, v{36+i}")
    a("v_cvt_pk_bf16_f32 v52, v36, v37\nv_cvt_pk_bf16_f32 v53, v38, v39\nv_cvt_pk_bf16_f32 v50, v40, v41\nv_add_f32 v16, v36, v37\nv_add_f32 v18, v38, v39")
    a(dpp("v_mov_b32",54,52,None,"row_shl:8",bc=True)); a(dpp("v_mov_b32",55,53,None,"row_shl:8",bc=True)); a(dpp("v_mov_b32",51,50,None,"row_shl:8",bc=True))
    a(f"""v_add_f32 v16, v16, v40
    v_add_f32 v18, v18, v41
    v_mfma_f32_16x16x32_bf16 v[20:23], {vr(VX)}, v[52:55], 0
    v_mfma_f32_16x16x32_bf16 v[24:27], {vr(VX+4)}, v[52:55], 0
    v_add_f32 v16, v16, v18
    v_mfma_f32_16x16x16_bf16 v[20:23], v[46:47], v[50:51], v[20:23]
    v_mfma_f32_16x16x16_bf16 v[24:27], v[48:49], v[50:51], v[24:27]""")
    x8("v_add_f32",16)
    a("v_rcp_f32 v16, v16\ns_nop 0")
    for i in range(8): a(f"v_mul_f32 v{20+i}, v16, v{20+i}")
    for i in range(4): a(f"v_cvt_pk_bf16_f32 v{28+i}, v{20+2*i}, v{21+2*i}")
    for i in range(4): a(f"v_min_u32 v{28+i}, -2, v{28+i}")
    a("s_mov_b64 exec, s[74:75]")
    st_intra(a,["global_store_dwordx4 v8, v[28:31], s[58:59]"])
    cst(a,DIAG,2)
    a("s_mov_b64 exec, -1\nL_CW_O:\ns_cmp_eq_u32 s60, 63\ns_cbranch_scc1 L_END")
    slotbase(a,56,0,OM_O,73); slotbase(a,58,0,PM_O,72)
    a("s_barrier")
    poll(a,[f"global_load_dwordx4 {vr(80+4*i)}, v9, s[56:57] offset:{1024*i}" for i in range(4)],range(80,96),16,DL[1])
    cst(a,DIAG,3)
    for ks in range(8):
        for T in range(2):
            d=vr(20+8*T+4*(ks%2)); a(f"v_mfma_f32_16x16x32_bf16 {d}, {ar((T*8+ks)*4)}, {vr(80+4*(ks//2))}, {'0' if ks<2 else d}")
    a.nop(7)
    merge4(a,20,24,28,32)
    a(f"ds_write_b128 v10, v[20:23]\ns_waitcnt lgkmcnt(0)\ns_barrier\ns_cmp_eq_u32 s54, 1\ns_cbranch_scc1 L_CR\ns_sleep {DL[4]}\ns_cmp_eq_u32 s54, 0\ns_cbranch_scc1 L_CP\ns_cmp_eq_u32 s54, 2\ns_cbranch_scc1 L_CK")
    a(f"s_cmp_lg_u32 s{sROLE}, 0\ns_cbranch_scc1 L_CNB"); add1(a,D_PROG,22)
    kvst="global_store_dwordx2 v14, v[40:41], s[64:65] sc1\nglobal_store_dwordx2 v13, v[44:45], s[66:67] sc1"
    a("s_branch L_CNB\nL_CK:\n"+kvst+"\ns_branch L_CNB\nL_CP:")
    slotbase(a,56,2,SC_O,70); slotbase(a,58,2,OM_O,71)
    st_intra(a,["global_store_dwordx4 v1, v[4:7], s[56:57]","global_store_dwordx4 v2, v[4:7], s[56:57] offset:1024","global_store_dwordx4 v2, v[4:7], s[58:59]"])
    a("s_add_u32 s61, s60, 1"); prefetch(); abases(1)
    a("L_CNB:\ns_barrier\ns_branch L_CN\nL_CR:")
    for w in range(4): a(f"ds_read_b128 {vr(16+4*w)}, v1 offset:{0x4000+w*1024}")
    a("s_waitcnt lgkmcnt(0)"); pkadd(a,16,16,20,4); pkadd(a,24,24,28,4); pkadd(a,16,16,24,4)
    a("global_store_dwordx4 v1, v[16:19], s[58:59] sc1"); cst(a,DIAG,4)
    slotbase(a,56,2,PM_O,72); slotbase(a,58,3,MM_O,71)
    a("global_store_dwordx4 v1, v[4:7], s[56:57] sc1")
    st_intra(a,["global_store_dwordx4 v2, v[4:7], s[58:59]"])
    for p in range(1,4):
        a(f"s_xor_b32 s43, s{sROLE}, {32*p}\ns_lshl_b32 s43, s43, 10"); slotbase(a,62+2*p,0,PM_O,43)
    slotbase(a,56,1,MM_O,71)
    poll(a,[f"global_load_dwordx4 {vr(32+4*p)}, v1, s[{64+2*p}:{65+2*p}]" for p in range(3)],range(32,44),20,DL[2])
    cst(a,DIAG,5)
    pkadd(a,16,16,32,4); pkadd(a,36,36,40,4); pkadd(a,16,16,36,4)
    a("v_cvt_pk_bf16_f32 v20, v16, v17\nv_cvt_pk_bf16_f32 v21, v18, v19\nv_min_u32 v20, -2, v20\nv_min_u32 v21, -2, v21")
    st_intra(a,["global_store_dwordx2 v14, v[20:21], s[56:57]"])
    cst(a,DIAG,6)
    a("s_barrier")
    a("L_CN:"); cdump(a,DIAG,116)
    a("s_add_u32 s60, s60, 1\ns_branch L_CW\nL_CA_X:\ns_barrier\ns_branch L_END\nL_CA_F:\n"+kvst+"\ns_waitcnt vmcnt(0)")
    add1(a,D_PROG,16)
    if DIAG: stamp(a,2,16,6)
    a("s_branch L_END")
```

```python
NAME="gated_mix__memory_aug_recurrent_mem_tr__grouped_kv_mqa__prompt"
MB=1<<20
QF,KF,VF,OA,OB=0,16*MB,32*MB,48*MB,64*MB
KBF=68*MB; VBF=KBF+128*1024; GATE=KBF+256*1024
KM,VM=72*MB,76*MB
QB=88*MB
XB=96*MB
MBOX=80*MB; SLOT=512*1024
SC_O,OM_O,PM_O,MM_O=0,256*1024,320*1024,448*1024
TS=84*MB
D_CNT,D_TOTAL,D_CINIT,D_KVB,D_PROG,D_KV,D_Q,D_OB,D_XA=0,32,36,40,44,64,96,128,160
sX,sMEM0,sWQ,sWK,sWV,sWO,sBWQ,sBWK,sBWV,sBWO,sGW,sOUT,sDBG,sWS=4,6,8,10,12,14,16,18,20,22,24,26,28,30
sSLOW,sROLE,sWAVE,sXCC,sTK,sG,sSPIN=32,33,34,35,36,37,38
SPINMAX=1<<19
class Asm:
    def __init__(s): s.l=[]; s.n=0
    def __call__(s,t):
        for x in t.strip('\n').split('\n'):
            x=x.strip()
            if x: s.l.append(x if x.endswith(':') else '  '+x)
    def lab(s,p='L'):
        s.n+=1; return f"{p}{s.n}"
    def nop(s,n):
        while n>0:
            k=min(n,16); s(f"s_nop {k-1}"); n-=k
    def text(s): return '\n'.join(s.l)+'\n'
def sp(r): return f"s[{r}:{r+1}]"
def vr(r,n=4): return f"v[{r}:{r+n-1}]"
def ar(r,n=4): return f"a[{r}:{r+n-1}]"
def base(a,d,src,off=None,soff=None):
    if soff is not None:
        a(f"s_add_u32 s{d}, s{src}, s{soff}\ns_addc_u32 s{d+1}, s{src+1}, 0"); src=d
    if off:
        a(f"s_add_u32 s{d}, s{src}, {off}\ns_addc_u32 s{d+1}, s{src+1}, 0"); src=d
    if src!=d: a(f"s_mov_b64 {sp(d)}, {sp(src)}")
def spin_check(a):
    a(f"s_sub_u32 s{sSPIN}, s{sSPIN}, 1\ns_cbranch_scc1 L_END")
def wait_ge(a,off,tgt,vt,sleep=4,soff=None,st=39):
    L=a.lab('W'); D=a.lab('WD')
    if soff is None: a(f"v_mov_b32 v{vt}, {off}")
    else: a(f"s_add_u32 s{st}, s{soff}, {off}\nv_mov_b32 v{vt}, s{st}")
    a(f"""s_mov_b32 s{sSPIN}, {SPINMAX}
    {L}:
    global_load_dword v{vt+1}, v{vt}, {sp(sDBG)} sc1
    s_waitcnt vmcnt(0)
    v_readfirstlane_b32 s{st}, v{vt+1}
    s_cmp_ge_u32 s{st}, {tgt}
    s_cbranch_scc1 {D}
    s_sleep {sleep}""")
    spin_check(a)
    a(f"s_branch {L}\n{D}:")
def wait_wg(a,off,tgt,vt,soff=None,sleep=4):
    S=a.lab('S')
    a(f"s_cmp_lg_u32 s{sWAVE}, 0\ns_cbranch_scc1 {S}")
    wait_ge(a,off,tgt,vt,sleep,soff)
    a(f"{S}:\ns_barrier")
def add1(a,off,vt,soff=None,st=39,val=1):
    if soff is None: a(f"v_mov_b32 v{vt}, {off}")
    else: a(f"s_add_u32 s{st}, s{soff}, {off}\nv_mov_b32 v{vt}, s{st}")
    a(f"""v_mov_b32 v{vt+1}, {val}
    s_mov_b64 exec, 1
    global_atomic_add v{vt}, v{vt+1}, {sp(sDBG)} sc1
    s_mov_b64 exec, -1""")
def signal(a,off,vt,soff=None,val=1):
    S=a.lab('S')
    a(f"s_waitcnt vmcnt(0)\ns_barrier\ns_cmp_lg_u32 s{sWAVE}, 0\ns_cbranch_scc1 {S}")
    add1(a,off,vt,soff,val=val)
    a(f"{S}:")
def stamp(a,idx,vt,cond_wave=0,dyn=None,mul=8):
    S=a.lab('T')
    a(f"""s_cmp_lg_u32 s{sWAVE}, {cond_wave}
    s_cbranch_scc1 {S}
    s_memrealtime s[98:99]
    s_memtime s[100:101]
    s_lshl_b32 s96, s40, 8
    {f's_mul_i32 s97, s{dyn}, {mul}' if dyn else 's_mov_b32 s97, 0'}
    s_add_u32 s96, s96, s97
    s_add_u32 s96, s96, {TS+idx*8}
    v_mov_b32 v{vt}, s96
    s_waitcnt lgkmcnt(0)
    v_mov_b32 v{vt+2}, s98
    v_mov_b32 v{vt+3}, s100
    global_store_dwordx2 v{vt}, v[{vt+2}:{vt+3}], {sp(sWS)}
    {S}:""")
def slab_dma(a,sb,ld,nrows,ldsoff_s,vt,lane):
    a(f"v_lshrrev_b32 v{vt}, 2, v{lane}\nv_and_b32 v{vt+1}, 3, v{lane}\nv_lshlrev_b32 v{vt+1}, 4, v{vt+1}")
    a(f"s_mov_b32 s39, {ld}\nv_mul_lo_u32 v{vt}, v{vt}, s39\nv_add_u32 v{vt}, v{vt}, v{vt+1}")
    for i in range(1,4): a(f"v_add_u32 v{vt+i}, {i*(16*ld-1024)}, v{vt}")
    a(f"s_mov_b64 s[94:95], {sp(sb)}\ns_mov_b32 m0, s{ldsoff_s}")
    for g in range(nrows//64):
        if g: a(f"s_add_u32 s94, s94, {64*ld}\ns_addc_u32 s95, s95, 0\ns_add_u32 m0, m0, 4096")
        a("s_nop 0")
        for i in range(4): a(f"global_load_lds_dwordx4 v{vt+i}, s[94:95] offset:{i*1024}")
```

```python
from common import *
import os
EXP=os.environ.get('EXP','')
def gemm(a,TM,TN,WM,swap,ldw,sxb,swb,lane,KS=16,accbase=0):
    WN=8//WM; MT=TM//WM//32; NT=TN//WN//32
    XI=TM//64; RB=TN*2; RPI=1024//RB; WI=64//RPI//8
    XSZ=TM*128; ST=XSZ+64*RB
    vXD,vWD,vXR,vWR,vF=2,6,10,14,32
    LPR=RB//16
    a(f"s_and_b32 s41, s{sWAVE}, {WM-1}\ns_lshr_b32 s42, s{sWAVE}, {WM.bit_length()-1}")
    a(f"""v_lshrrev_b32 v16, 3, v{lane}
    s_mul_i32 s43, s{sWAVE}, {8*XI}
    v_add_u32 v16, s43, v16
    v_and_b32 v17, 7, v{lane}""")
    for i in range(XI):
        a(f"""v_add_u32 v18, {8*i}, v16
        v_bfe_u32 v19, v18, 1, 3
        v_xor_b32 v19, v19, v17
        v_lshlrev_b32 v19, 4, v19
        v_lshl_add_u32 v{vXD+i}, v18, 11, v19""")
        if i: a(f"v_subrev_u32 v{vXD+i}, {1024*i}, v{vXD+i}")
    a(f"""v_lshrrev_b32 v16, {LPR.bit_length()-1}, v{lane}
    s_add_u32 s43, s{sWAVE}, s{sWAVE}
    s_lshl_b32 s43, s43, 2
    v_add_u32 v16, s43, v16
    v_and_b32 v17, {LPR-1}, v{lane}
    s_mov_b32 s44, {ldw}
    s_lshl_b32 s48, s44, 6""")
    for i in range(WI):
        a(f"""v_add_u32 v18, {RPI*i}, v16
        v_and_b32 v19, 3, v18
        v_lshlrev_b32 v19, 2, v19
        v_xor_b32 v19, v19, v17
        v_lshlrev_b32 v19, 4, v19
        v_mul_lo_u32 v18, v18, s44
        v_add_u32 v{vWD+i}, v18, v19""")
        if i: a(f"v_subrev_u32 v{vWD+i}, {1024*i}, v{vWD+i}")
    a(f"""v_and_b32 v16, 31, v{lane}
    v_lshrrev_b32 v17, 5, v{lane}
    v_bfe_u32 v18, v16, 1, 3
    s_mul_i32 s43, s41, {MT*32*128}
    v_lshl_add_u32 v16, v16, 7, s43""")
    for ks in range(4):
        a(f"v_add_u32 v19, {2*ks}, v17\nv_xor_b32 v19, v19, v18\nv_lshl_add_u32 v{vXR+ks}, v19, 4, v16")
    a(f"""v_bfe_u32 v16, v{lane}, 2, 2
    v_lshrrev_b32 v17, 5, v{lane}
    v_lshl_add_u32 v17, v17, 3, v16
    v_mul_u32_u24 v17, {RB}, v17
    v_bfe_u32 v18, v{lane}, 4, 1
    v_lshlrev_b32 v18, 5, v18
    v_and_b32 v19, 3, v{lane}
    v_lshl_add_u32 v18, v19, 3, v18
    v_add_u32 v17, v17, v18
    v_add_u32 v17, {XSZ}, v17""")
    for nt in range(NT):
        a(f"s_mul_i32 s43, s42, {NT}\ns_add_u32 s43, s43, {nt}\nv_xor_b32 v19, s43, v16\nv_lshl_add_u32 v{vWR+nt}, v19, 6, v17")
    a(f"s_mul_i32 s45, s{sWAVE}, {XI*1024}\ns_mul_i32 s46, s{sWAVE}, {WI*1024}\ns_add_u32 s46, s46, {XSZ}")
    def dma():
        a("s_mov_b32 m0, s45\ns_nop 0")
        for i in range(XI): a(f"global_load_lds_dwordx4 v{vXD+i}, {sp(sxb)} offset:{i*1024}")
        a("s_mov_b32 m0, s46\ns_nop 0")
        for i in range(WI): a(f"global_load_lds_dwordx4 v{vWD+i}, {sp(swb)} offset:{i*1024}")
        a(f"s_add_u32 s{sxb}, s{sxb}, 128\ns_addc_u32 s{sxb+1}, s{sxb+1}, 0\ns_add_u32 s{swb}, s{swb}, s48\ns_addc_u32 s{swb+1}, s{swb+1}, 0")
        a("s_xor_b32 s45, s45, 0x10000\ns_xor_b32 s46, s46, 0x10000")
    FS=(MT+NT)*4
    def reads(ks,st):
        r=[]
        for nt in range(NT):
            for h in range(2): r.append(f"ds_read_b64_tr_b16 {vr(vF+st*FS+MT*4+nt*4+2*h,2)}, v{vWR+nt} offset:{(16*ks+4*h)*RB}")
        for mt in range(MT): r.append(f"ds_read_b128 {vr(vF+st*FS+mt*4)}, v{vXR+ks} offset:{mt*4096}")
        return r
    def mfmas(st,first=False):
        r=[]
        for mt in range(MT):
            for nt in range(NT):
                d=ar(accbase+(mt*NT+nt)*16,16); x=vr(vF+st*FS+mt*4); w=vr(vF+st*FS+MT*4+nt*4)
                c='0' if first else d
                r.append(f"v_mfma_f32_32x32x16_bf16 {d}, {x}, {w}, {c}" if swap else f"v_mfma_f32_32x32x16_bf16 {d}, {w}, {x}, {c}")
        return r
    def inter(m,o):
        if EXP=='nomm': return
        k=0
        for i,x in enumerate(m):
            a(x)
            n=(len(o)*(i+1)+len(m)-1)//len(m)
            while k<n: a(o[k]); k+=1
    tog=[f"v_xor_b32 v{vXR+k}, 0x10000, v{vXR+k}" for k in range(4)]+[f"v_xor_b32 v{vWR+n}, 0x10000, v{vWR+n}" for n in range(NT)]
    a("s_barrier")
    dma(); dma()
    a(f"s_waitcnt vmcnt({XI+WI})\ns_barrier")
    for x in reads(0,0): a(x)
    def kstep(first,mode):
        for ks in range(3):
            a("s_waitcnt lgkmcnt(0)")
            inter(mfmas(ks%2,first and ks==0),reads(ks+1,(ks+1)%2))
        a("s_waitcnt lgkmcnt(0)")
        if mode!='last':
            a("s_waitcnt vmcnt(0)\ns_barrier")
            for x in tog: a(x)
            for x in reads(0,0): a(x)
            if mode=='dma' and EXP!='nodma': dma()
        for x in (mfmas(1) if EXP!='nomm' else []): a(x)
    kstep(True,'dma')
    L=a.lab('G')
    a(f"s_mov_b32 s47, {KS-3}\n{L}:")
    kstep(False,'dma')
    a(f"s_sub_u32 s47, s47, 1\ns_cmp_lg_u32 s47, 0\ns_cbranch_scc1 {L}")
    kstep(False,'nodma')
    kstep(False,'last')
    a.nop(12)
    return MT,NT
```

```python
from common import *
from gemm import gemm
import math,struct
def fbits(x): return hex(struct.unpack('<I',struct.pack('<f',x))[0])
LANE=0
def pack8(a,dst,src,acc=True,mul=None,tmp=None):
    if acc:
        for i in range(8): a(f"v_accvgpr_read_b32 v{tmp+i}, a{src+i}")
        src=tmp
    if mul is not None:
        for i in range(8): a(f"v_mul_f32 v{tmp+i}, v{mul}, v{src+i}")
        src=tmp
    for i in range(4): a(f"v_cvt_pk_bf16_f32 v{dst+i}, v{src+2*i}, v{src+2*i+1}")
def epi(a,MT,NT,segstride,mul=None):
    a(f"v_lshlrev_b32 v2, 4, v{LANE}")
    k=0
    for mt in range(MT):
        for nt in range(NT):
            for t in range(2):
                d=16+4*(k%4); k+=1
                pack8(a,d,(mt*NT+nt)*16+8*t,tmp=8,mul=mul)
                a(f"global_store_dwordx4 v2, {vr(d)}, s[56:57] offset:{(2*nt+t)*1024} sc1")
        if mt<MT-1: a(f"s_add_u32 s56, s56, {segstride}\ns_addc_u32 s57, s57, 0")
def gemm1(a,DIAG):
    a("s_mov_b32 s52, 0\nL_G1:")
    a(f"""s_mov_b32 s63, 8192
    s_mov_b32 s64, 18
    s_mov_b32 s61, 0
    s_cmp_eq_u32 s52, 2
    s_cbranch_scc1 L_G1Q
    s_lshr_b32 s53, s51, 3
    s_lshl_b32 s39, s52, 2
    s_add_u32 s53, s53, s39
    s_add_u32 s53, s53, 1
    s_cmp_eq_u32 s53, 8
    s_cbranch_scc1 L_G1B
    s_and_b32 s54, s51, 7
    s_lshl_b32 s39, s50, 3
    s_add_u32 s54, s54, s39
    s_and_b32 s55, s54, 15
    s_mov_b32 s60, {KF}
    s_cmp_ge_u32 s54, 16
    s_cselect_b64 s[58:59], {sp(sWV)}, {sp(sWK)}
    s_cselect_b32 s60, {VF}, s60
    s_cselect_b32 s61, 1, 0
    s_lshl_b32 s62, s53, 2
    s_add_u32 s62, s62, {D_KV}
    s_mov_b32 s65, 4
    s_branch L_G1C
    L_G1B:
    s_and_b32 s53, s51, 7
    s_mov_b32 s55, s50
    s_mov_b64 s[58:59], {sp(sBWQ)}
    s_mov_b32 s60, {QB}
    s_mov_b32 s61, 2
    s_mov_b32 s62, {D_KVB}
    s_mov_b32 s63, 2048
    s_mov_b32 s64, 16
    s_mov_b32 s65, 1
    s_branch L_G1C
    L_G1Q:
    s_lshr_b32 s53, s51, 2
    s_and_b32 s55, s51, 3
    s_lshl_b32 s39, s50, 2
    s_add_u32 s55, s55, s39
    s_mov_b64 s[58:59], {sp(sWQ)}
    s_mov_b32 s60, {QF}
    s_lshl_b32 s62, s53, 2
    s_add_u32 s62, s62, {D_Q}
    s_mov_b32 s65, 1
    L_G1C:
    s_lshl_b32 s39, s55, 9
    s_add_u32 s58, s58, s39
    s_addc_u32 s59, s59, 0
    s_lshl_b32 s39, s53, 19""")
    base(a,56,sX,soff=39)
    a("s_cmp_eq_u32 s61, 1\ns_cbranch_scc1 L_G1V")
    gemm(a,256,256,2,0,'s63',56,58,LANE)
    a("s_branch L_G1E\nL_G1V:")
    gemm(a,256,256,2,1,'s63',56,58,LANE)
    a("L_G1E:")
    if DIAG: stamp(a,24,2,0,52,8)
    a(f"""s_lshl_b32 s43, s53, 3
    s_lshl_b32 s39, s41, 2
    s_add_u32 s43, s43, s39
    s_lshl_b32 s43, s43, s64
    s_lshl_b32 s39, s55, 14
    s_add_u32 s43, s43, s39
    s_lshl_b32 s39, s42, 12
    s_add_u32 s43, s43, s39
    s_add_u32 s43, s43, s60""")
    base(a,56,sWS,soff=43)
    a("s_cmp_eq_u32 s61, 2\ns_cbranch_scc1 L_G1S")
    epi(a,4,2,0x40000)
    a(f"s_branch L_G1F\nL_G1S:\nv_mov_b32 v3, {fbits(32**-0.5*math.log2(math.e))}")
    epi(a,4,2,0x10000,mul=3)
    a("L_G1F:")
    signal(a,0,2,soff=62,val='s65')
    if DIAG: stamp(a,5,2,0,52,8)
    a("s_add_u32 s52, s52, 1\ns_cmp_lt_u32 s52, 3\ns_cbranch_scc1 L_G1")
def kv0(a):
    a(f"""s_and_b32 s53, s{sROLE}, 1
    s_lshr_b32 s54, s{sROLE}, 1
    s_and_b32 s55, s54, 31
    s_mov_b32 s60, {KF}
    s_cmp_ge_u32 s54, 32
    s_cselect_b64 s[58:59], {sp(sWV)}, {sp(sWK)}
    s_cselect_b32 s60, {VF}, s60
    s_lshl_b32 s39, s55, 8
    s_add_u32 s58, s58, s39
    s_addc_u32 s59, s59, 0
    s_lshl_b32 s39, s53, 18""")
    base(a,56,sX,soff=39)
    a("s_cmp_ge_u32 s54, 32\ns_cbranch_scc1 L_K0V")
    gemm(a,128,128,4,0,8192,56,58,LANE)
    a("s_branch L_K0E\nL_K0V:")
    gemm(a,128,128,4,1,8192,56,58,LANE)
    a(f"""L_K0E:
    s_lshl_b32 s43, s53, 2
    s_add_u32 s43, s43, s41
    s_lshl_b32 s43, s43, 18
    s_lshl_b32 s39, s55, 13
    s_add_u32 s43, s43, s39
    s_lshl_b32 s39, s42, 12
    s_add_u32 s43, s43, s39
    s_add_u32 s43, s43, s60""")
    base(a,56,sWS,soff=43)
    epi(a,1,2,0)
    signal(a,D_KV,2)
def red8_write(a,src,vaddr,buf,acc=False):
    for b in range(4): a(f"ds_write_b128 v{vaddr}, {(ar if acc else vr)(src+4*b)} offset:{buf+b*1024}")
def kvb_gate(a):
    a(f"""s_lshr_b32 s53, s{sROLE}, 1
    s_and_b32 s54, s{sROLE}, 1
    s_cmp_eq_u32 s54, 1
    s_cselect_b64 s[58:59], {sp(sBWV)}, {sp(sBWK)}
    s_lshl_b32 s39, s{sWAVE}, 13
    s_add_u32 s58, s58, s39
    s_addc_u32 s59, s59, 0
    s_lshl_b32 s55, s{sWAVE}, 13""")
    slab_dma(a,58,64,128,55,2,LANE)
    a(f"""s_lshl_b32 s39, s53, 16
    s_lshl_b32 s43, s{sWAVE}, 8
    s_add_u32 s39, s39, s43""")
    base(a,56,sX,soff=39)
    a(f"""v_and_b32 v6, 31, v{LANE}
    v_lshrrev_b32 v7, 5, v{LANE}
    v_lshlrev_b32 v7, 4, v7
    v_lshl_add_u32 v6, v6, 11, v7""")
    for ks in range(8): a(f"global_load_dwordx4 {vr(32+4*ks)}, v6, s[56:57] offset:{32*ks}")
    a(f"""s_lshl_b32 s39, s{sROLE}, 15
    s_lshl_b32 s43, s{sWAVE}, 12
    s_add_u32 s39, s39, s43""")
    base(a,56,sX,soff=39)
    a(f"v_lshlrev_b32 v8, 6, v{LANE}\nv_and_b32 v9, 0x7ff, v8")
    for i in range(4): a(f"global_load_dwordx4 {vr(64+4*i)}, v8, s[56:57] offset:{16*i}\nglobal_load_dwordx4 {vr(80+4*i)}, v9, {sp(sGW)} offset:{16*i}")
    a(f"""v_bfe_u32 v10, v{LANE}, 2, 2
    v_lshrrev_b32 v11, 5, v{LANE}
    v_lshl_add_u32 v10, v11, 3, v10
    v_lshlrev_b32 v10, 6, v10
    v_bfe_u32 v11, v{LANE}, 4, 1
    v_lshl_add_u32 v10, v11, 5, v10
    v_and_b32 v11, 3, v{LANE}
    v_lshl_add_u32 v10, v11, 3, v10
    v_add_u32 v10, s55, v10
    s_waitcnt vmcnt(8)""")
    for ks in range(8):
        for h in range(2): a(f"ds_read_b64_tr_b16 {ar(4*ks+2*h,2)}, v10 offset:{(16*ks+4*h)*64}")
    a("s_waitcnt lgkmcnt(0)\ns_cmp_eq_u32 s54, 1\ns_cbranch_scc1 L_KVB_V")
    for ks in range(8): a(f"v_mfma_f32_32x32x16_bf16 v[16:31], {ar(4*ks)}, {vr(32+4*ks)}, {'0' if ks==0 else 'v[16:31]'}")
    a("s_branch L_KVB_E\nL_KVB_V:")
    for ks in range(8): a(f"v_mfma_f32_32x32x16_bf16 v[16:31], {vr(32+4*ks)}, {ar(4*ks)}, {'0' if ks==0 else 'v[16:31]'}")
    a("L_KVB_E:\ns_waitcnt vmcnt(0)\nv_mov_b32 v12, 0")
    for i in range(16):
        a(f"""v_lshlrev_b32 v13, 16, v{64+i}
        v_lshlrev_b32 v14, 16, v{80+i}
        v_fmac_f32 v12, v13, v14
        v_and_b32 v13, 0xffff0000, v{64+i}
        v_and_b32 v14, 0xffff0000, v{80+i}
        v_fmac_f32 v12, v13, v14""")
    for x in (1,2,4,8,16):
        a(f"ds_swizzle_b32 v13, v12 offset:{(x<<10)|0x1f}\ns_waitcnt lgkmcnt(0)\nv_add_f32 v12, v12, v13")
    a(f"""v_mul_f32 v12, 0xbfb8aa3b, v12
    v_exp_f32 v12, v12
    s_nop 0
    v_add_f32 v12, 1.0, v12
    v_rcp_f32 v12, v12
    s_lshl_b32 s39, s{sROLE}, 6
    s_lshl_b32 s43, s{sWAVE}, 3
    s_add_u32 s39, s39, s43
    s_add_u32 s39, s39, {GATE}
    v_lshrrev_b32 v13, 5, v{LANE}
    v_lshl_add_u32 v13, v13, 2, s39
    s_mov_b32 exec_lo, 1
    s_mov_b32 exec_hi, 1
    global_store_dword v13, v12, {sp(sWS)} sc1
    s_mov_b64 exec, -1
    s_lshl_b32 s39, s{sWAVE}, 12
    v_lshl_add_u32 v11, v{LANE}, 4, s39
    v_add_u32 v11, 0x10000, v11""")
    red8_write(a,16,11,0)
    a(f"""s_waitcnt lgkmcnt(0)
    s_barrier
    s_cmp_ge_u32 s{sWAVE}, 2
    s_cbranch_scc1 L_KVB_D
    s_lshl_b32 s39, s{sWAVE}, 11
    v_lshl_add_u32 v11, v{LANE}, 4, s39
    v_add_u32 v11, 0x10000, v11""")
    for w in range(8): a(f"ds_read_b128 {vr(32+8*w)}, v11 offset:{w*4096}\nds_read_b128 {vr(36+8*w)}, v11 offset:{w*4096+1024}")
    a("s_waitcnt lgkmcnt(0)")
    for w in range(1,8):
        for i in range(8): a(f"v_add_f32 v{32+i}, v{32+i}, v{32+8*w+i}")
    pack8(a,16,32,acc=False)
    a(f"""s_lshl_b32 s39, s54, 17
    s_lshl_b32 s43, s53, 11
    s_add_u32 s39, s39, s43
    s_lshl_b32 s43, s{sWAVE}, 10
    s_add_u32 s39, s39, s43
    s_add_u32 s39, s39, {KBF}
    v_lshl_add_u32 v11, v{LANE}, 4, s39
    global_store_dwordx4 v11, v[16:19], {sp(sWS)} sc1
    L_KVB_D:""")
    signal(a,D_KVB,2)
```

```python
from common import *
from gemm import gemm
from worker1 import pack8, red8_write, LANE
import math,struct
def fbits(x): return hex(struct.unpack('<I',struct.pack('<f',x))[0])
def xhalf(a,op,v,t):
    a(f"v_mov_b32 v{t}, v{v}\ns_nop 1\nv_permlane32_swap_b32 v{t}, v{v}\ns_nop 1\n{op} v{v}, v{v}, v{t}")
def maxn(a,dst,regs):
    regs=list(regs)
    a(f"v_max3_f32 v{dst}, v{regs[0]}, v{regs[1]}, v{regs[2]}"); k=3
    while k+1<len(regs): a(f"v_max3_f32 v{dst}, v{dst}, v{regs[k]}, v{regs[k+1]}"); k+=2
    if k<len(regs): a(f"v_max_f32 v{dst}, v{dst}, v{regs[k]}")
def battn(a):
    a(f"""s_lshr_b32 s53, s51, 3
    s_lshl_b32 s39, s50, 2
    s_add_u32 s53, s53, s39
    s_and_b32 s54, s51, 7
    s_lshl_b32 s39, s53, 18""")
    aO,aQ,aK,aV=32,64,80,96; S,NM=32,96
    a(f"s_and_b32 s41, s{sWAVE}, 3\ns_lshr_b32 s42, s{sWAVE}, 2")
    for i in range(32): a(f"v_accvgpr_write_b32 a{aO+i}, 0")
    wait_wg(a,D_KVB,160,2)
    a(f"s_lshl_b32 s43, s53, 2\ns_add_u32 s43, s43, s41\ns_lshl_b32 s43, s43, 16\ns_lshl_b32 s39, s54, 13\ns_add_u32 s43, s43, s39\ns_lshl_b32 s39, s42, 12\ns_add_u32 s43, s43, s39\ns_add_u32 s43, s43, {QB}\nv_lshl_add_u32 v2, v{LANE}, 4, s43")
    for k in range(4): a(f"global_load_dwordx4 {ar(aQ+4*k)}, v2, {sp(sWS)} offset:{k*1024} sc1")
    a(f"""s_lshl_b32 s39, s{sWAVE}, 12
    v_lshl_add_u32 v2, v{LANE}, 4, s39
    v_lshlrev_b32 v3, 4, v{LANE}
    s_mov_b32 s45, s39
    v_mov_b32 v4, 0
    v_mov_b32 v5, 0
    v_mov_b32 v6, 0
    v_mov_b32 v7, 0""")
    base(a,56,sWS,KBF); base(a,58,sWS,VBF)
    def dma():
        a("s_mov_b32 m0, s45\ns_nop 0")
        for i in range(4): a(f"global_load_lds_dwordx4 v2, s[56:57] offset:{i*1024} sc1")
        a("s_add_u32 m0, m0, 0x8000\ns_nop 0")
        for i in range(4): a(f"global_load_lds_dwordx4 v2, s[58:59] offset:{i*1024} sc1")
        a("s_add_u32 s56, s56, 0x8000\ns_addc_u32 s57, s57, 0\ns_add_u32 s58, s58, 0x8000\ns_addc_u32 s59, s59, 0\ns_xor_b32 s45, s45, 0x10000")
    def rdK():
        for k in range(4): a(f"ds_read_b128 {ar(aK+4*k)}, v3 offset:{k*1024}")
    def rdV():
        for k in range(4): a(f"ds_read_b128 {ar(aV+4*k)}, v3 offset:{0x8000+k*1024}")
    def smm(h,zero=False):
        for tl in range(2):
            d=vr(S+h*32+tl*16,16)
            a(f"v_mfma_f32_32x32x16_bf16 {d}, {ar(aK+tl*8)}, {ar(aQ+h*8)}, {'0' if zero else vr(NM+h*16,16)}")
            a(f"v_mfma_f32_32x32x16_bf16 {d}, {ar(aK+tl*8+4)}, {ar(aQ+h*8+4)}, {d}")
    dma(); dma()
    a("s_waitcnt vmcnt(8)\ns_barrier"); rdK(); a("s_waitcnt lgkmcnt(0)")
    smm(0,True); smm(1,True); a.nop(12)
    for h in range(2):
        maxn(a,8,range(S+h*32,S+h*32+32)); xhalf(a,"v_max_f32",8,9)
        for i in range(16): a(f"v_sub_f32 v{NM+h*16+i}, 0, v8")
    a("s_mov_b32 s60, 0\ns_mov_b32 s62, 0x41000000\nL_BA_C:\ns_mov_b32 s61, 0\nL_BA_I:")
    rdV(); a("s_waitcnt lgkmcnt(4)")
    smm(0); smm(1)
    a("v_add_u32 v3, 0x1000, v3")
    for h in range(2):
        b=S+h*32
        if h==0: a.nop(8)
        maxn(a,8,range(b,b+32))
        a(f"v_cmp_lt_f32 vcc, s62, v8\ns_nop 1\ns_cbranch_vccnz L_BA_R{h}\nL_BA_B{h}:")
        for i in range(32):
            a(f"v_exp_f32 v{b+i}, v{b+i}")
            if i>=2: a(f"v_add_f32 v{4+2*h+(i&1)}, v{4+2*h+(i&1)}, v{b+i-2}")
        a(f"v_add_f32 v{4+2*h}, v{4+2*h}, v{b+30}\nv_add_f32 v{5+2*h}, v{5+2*h}, v{b+31}")
        for i in range(16): a(f"v_cvt_pk_bf16_f32 v{b+i}, v{b+2*i}, v{b+2*i+1}")
        if h==0:
            a("s_waitcnt lgkmcnt(0)\ns_cmp_eq_u32 s61, 7\ns_cbranch_scc1 L_BA_NK"); rdK(); a("L_BA_NK:")
        a("s_nop 1")
        for k in range(4): a(f"v_mfma_f32_32x32x16_bf16 {ar(aO+h*16,16)}, {ar(aV+4*k)}, {vr(b+4*k)}, {ar(aO+h*16,16)}")
    a(f"""s_add_u32 s61, s61, 1
    s_cmp_lt_u32 s61, 8
    s_cbranch_scc1 L_BA_I
    s_add_u32 s60, s60, 1
    s_cmp_eq_u32 s60, 4
    s_cbranch_scc1 L_BA_E
    s_waitcnt vmcnt(0)
    s_barrier
    v_add_u32 v3, 0x8000, v3
    v_and_b32 v3, 0x1ffff, v3""")
    rdK()
    a("s_cmp_eq_u32 s60, 3\ns_cbranch_scc1 L_BA_C"); dma(); a("s_branch L_BA_C")
    for h in range(2):
        b=S+h*32
        a(f"L_BA_R{h}:"); xhalf(a,"v_max_f32",8,9)
        a("v_max_f32 v8, 0, v8\nv_sub_f32 v9, 0, v8\nv_exp_f32 v9, v9")
        for i in range(32): a(f"v_sub_f32 v{b+i}, v{b+i}, v8")
        a.nop(16)
        for i in range(16): a(f"v_sub_f32 v{NM+h*16+i}, v{NM+h*16+i}, v8")
        a(f"v_mul_f32 v{4+2*h}, v{4+2*h}, v9\nv_mul_f32 v{5+2*h}, v{5+2*h}, v9")
        for i in range(16): a(f"v_accvgpr_read_b32 v10, a{aO+h*16+i}\nv_mul_f32 v10, v10, v9\nv_accvgpr_write_b32 a{aO+h*16+i}, v10")
        a(f"s_branch L_BA_B{h}")
    a(f"""L_BA_E:
    s_lshl_b32 s43, s53, 2
    s_add_u32 s43, s43, s41
    s_lshl_b32 s39, s43, 7
    s_add_u32 s39, s39, {GATE}
    v_and_b32 v8, 31, v{LANE}
    v_lshl_add_u32 v8, v8, 2, s39
    global_load_dword v8, v8, {sp(sWS)} sc1
    s_lshl_b32 s43, s43, 16
    s_lshl_b32 s39, s54, 13
    s_add_u32 s43, s43, s39
    s_lshl_b32 s39, s42, 12
    s_add_u32 s43, s43, s39
    s_add_u32 s43, s43, {OB}
    v_lshl_add_u32 v2, v{LANE}, 4, s43
    v_add_f32 v4, v4, v5
    v_add_f32 v6, v6, v7""")
    xhalf(a,"v_add_f32",4,9); xhalf(a,"v_add_f32",6,9)
    a("v_rcp_f32 v4, v4\nv_rcp_f32 v6, v6\ns_waitcnt vmcnt(0)\nv_sub_f32 v8, 1.0, v8\nv_mul_f32 v4, v4, v8\nv_mul_f32 v6, v6, v8")
    for h in range(2):
        for t in range(2):
            d=32+8*h+4*t
            pack8(a,d,aO+h*16+8*t,mul=4+2*h,tmp=16)
            a(f"global_store_dwordx4 v2, {vr(d)}, {sp(sWS)} offset:{(2*h+t)*1024} sc1")
    a("s_lshr_b32 s53, s53, 1\ns_lshl_b32 s53, s53, 2")
    signal(a,D_OB,2,soff=53)
def final_weights(a):
    a(f"""s_barrier
    s_lshl_b32 s39, s{sWAVE}, 20
    s_lshl_b32 s43, s51, 6
    s_add_u32 s39, s39, s43
    s_lshl_b32 s55, s{sWAVE}, 14
    v_bfe_u32 v10, v{LANE}, 2, 2
    v_lshrrev_b32 v11, 5, v{LANE}
    v_lshl_add_u32 v10, v11, 2, v10
    v_lshlrev_b32 v10, 6, v10
    v_bfe_u32 v11, v{LANE}, 4, 1
    v_lshl_add_u32 v10, v11, 5, v10
    v_and_b32 v11, 3, v{LANE}
    v_lshl_add_u32 v10, v11, 3, v10
    v_add_u32 v11, s55, v10""")
    base(a,58,sWO,soff=39)
    for rnd in range(2):
        slab_dma(a,58,2048,256,55,2,LANE)
        a("s_waitcnt vmcnt(0)")
        for ks in range(16):
            for h in range(2): a(f"ds_read_b64_tr_b16 {ar(rnd*64+4*ks+2*h,2)}, v11 offset:{(16*ks+8*h)*64}")
        a("s_waitcnt lgkmcnt(0)\ns_add_u32 s58, s58, 0x80000\ns_addc_u32 s59, s59, 0")
    a(f"s_barrier\ns_lshl_b32 s39, s{sWAVE}, 18\ns_add_u32 s39, s39, s43\ns_lshl_b32 s55, s{sWAVE}, 13\ns_add_u32 s55, s55, 0x10000\nv_add_u32 v11, s55, v10")
    base(a,58,sBWO,soff=39)
    slab_dma(a,58,2048,128,55,2,LANE)
    a("s_waitcnt vmcnt(0)")
    for ks in range(8):
        for h in range(2): a(f"ds_read_b64_tr_b16 {vr(32+4*ks+2*h,2)}, v11 offset:{(16*ks+8*h)*64}")
    a(f"v_lshl_add_u32 v11, v{LANE}, 4, s55\ns_waitcnt lgkmcnt(0)")
    for ks in range(8): a(f"ds_write_b128 v11, {vr(32+4*ks)} offset:{ks*1024}")
def xattn(a):
    Q,K,M,SX,SM=0+4,36,68,100,36
    a(f"""s_lshl_b32 s39, s64, 18
    s_lshl_b32 s43, s51, 13
    s_add_u32 s65, s39, s43
    s_lshr_b32 s66, s65, 2
    v_lshlrev_b32 v2, 4, v{LANE}
    v_and_b32 v3, 7, v{LANE}
    v_lshlrev_b32 v3, 4, v3
    v_lshrrev_b32 v1, 5, v{LANE}
    v_lshl_add_u32 v3, v1, 7, v3""")
    base(a,56,sWS,QF+4096,soff=65); base(a,58,sWS,KF+4096,soff=65); base(a,60,sWS,KM,soff=66)
    for t in range(8):
        a(f"global_load_dwordx4 {vr(Q+4*t)}, v2, s[56:57] offset:{t*1024-4096} sc1")
        a(f"global_load_dwordx4 {vr(K+4*t)}, v2, s[58:59] offset:{t*1024-4096} sc1")
    for t in range(8): a(f"global_load_dwordx4 {vr(M+4*t)}, v3, s[60:61] offset:{t*256} sc1")
    a(f"""s_lshl_b32 s39, s64, 7
    s_add_u32 s39, s39, {GATE}
    v_and_b32 v116, 31, v{LANE}
    v_lshl_add_u32 v117, v116, 2, s39
    global_load_dword v117, v117, {sp(sWS)} sc1
    v_lshlrev_b32 v118, 2, v1
    v_sub_u32 v118, v116, v118
    v_lshlrev_b32 v119, 3, v1
    v_lshl_add_u32 v119, v116, 4, v119""")
    base(a,56,sWS,VF+4096,soff=65); base(a,58,sWS,VM,soff=66); base(a,60,sWS,OA+4096,soff=65)
    for t in range(8):
        a(f"s_waitcnt vmcnt({9+2*(7-t)})\nv_mfma_f32_32x32x16_bf16 {vr(SX,16)}, {vr(K+4*t)}, {vr(Q+4*t)}, {'0' if t==0 else vr(SX,16)}")
    a("s_waitcnt vmcnt(0)")
    for t in range(8): a(f"v_mfma_f32_32x32x16_bf16 {vr(SM,16)}, {vr(M+4*t)}, {vr(Q+4*t)}, {'0' if t==0 else vr(SM,16)}")
    V=M; W=Q
    a.nop(4)
    for u in range(8): a(f"global_load_dwordx4 {vr(V+4*u)}, v2, s[56:57] offset:{u*1024-4096} sc1")
    for dt in range(4):
        a(f"global_load_dwordx2 {vr(W+4*dt,2)}, v119, s[58:59] offset:{dt*512} sc1")
        a(f"v_mov_b32 v{W+4*dt+2}, 0\nv_mov_b32 v{W+4*dt+3}, 0")
    a("v_mov_b32 v120, 0xff800000")
    for i in range(16): a(f"v_cmp_ge_i32 s[{68+2*(i%8)}:{69+2*(i%8)}], v118, {8*(i//4)+i%4}\n" + (f"v_cndmask_b32 v{SX+i-2}, v120, v{SX+i-2}, s[{68+2*((i-2)%8)}:{69+2*((i-2)%8)}]" if i>=2 else ""))
    a("s_nop 1")
    for i in (14,15): a(f"v_cndmask_b32 v{SX+i}, v120, v{SX+i}, s[{68+2*(i%8)}:{69+2*(i%8)}]")
    vals=list(range(SX,SX+16))+list(range(SM,SM+4))
    maxn(a,121,vals); xhalf(a,"v_max_f32",121,122)
    c=fbits(128**-0.5*math.log2(math.e))
    a(f"s_mov_b32 s39, {c}\nv_mul_f32 v121, s39, v121")
    for r in vals: a(f"v_fma_f32 v{r}, v{r}, s39, -v121")
    for r in vals: a(f"v_exp_f32 v{r}, v{r}")
    a(f"s_nop 0\nv_add_f32 v121, v{vals[0]}, v{vals[1]}")
    for r in vals[2:]: a(f"v_add_f32 v121, v121, v{r}")
    xhalf(a,"v_add_f32",121,122)
    a("v_rcp_f32 v121, v121")
    for i in range(8): a(f"v_cvt_pk_bf16_f32 v{SX+i}, v{SX+2*i}, v{SX+2*i+1}")
    a(f"v_cvt_pk_bf16_f32 v{SX+8}, v{SM}, v{SM+1}\nv_cvt_pk_bf16_f32 v{SX+9}, v{SM+2}, v{SM+3}\nv_mov_b32 v{SX+10}, 0\nv_mov_b32 v{SX+11}, 0\nv_mul_f32 v121, v121, v117\ns_waitcnt vmcnt(0)")
    O=[36,52]
    def pv(dt):
        o=vr(O[dt%2],16)
        a(f"v_mfma_f32_32x32x16_bf16 {o}, {vr(V+8*dt)}, {vr(SX)}, 0\nv_mfma_f32_32x32x16_bf16 {o}, {vr(V+8*dt+4)}, {vr(SX+4)}, {o}\nv_mfma_f32_32x32x16_bf16 {o}, {vr(W+4*dt)}, {vr(SX+8)}, {o}")
    pv(0)
    for dt in range(4):
        if dt<3: pv(dt+1); a.nop(10)
        else: a.nop(12)
        for t in range(2):
            pack8(a,20+4*t,O[dt%2]+8*t,acc=False,mul=121,tmp=28)
            a(f"global_store_dwordx4 v2, {vr(20+4*t)}, s[60:61] offset:{(2*dt+t)*1024-4096} sc1")
        a("s_nop 1")
def final(a,DIAG):
    final_weights(a)
    a("s_mov_b32 s52, 0\nL_FB:")
    a(f"""s_lshr_b32 s62, 8, s52
    s_max_u32 s62, s62, 1
    s_lshl_b32 s39, s62, 3
    s_sub_u32 s63, 64, s39
    s_cmp_eq_u32 s52, 4
    s_cselect_b32 s63, 60, s63
    s_mul_i32 s39, s62, s50
    s_add_u32 s63, s63, s39
    s_add_u32 s67, s63, s62
    s_add_u32 s67, s67, 2
    s_cmp_ge_u32 s67, 64
    s_cselect_b32 s67, 191, s67
    s_lshr_b32 s53, s63, 3
    s_lshl_b32 s53, s53, 2
    s_cmp_lg_u32 s{sWAVE}, 0
    s_cbranch_scc1 L_FB_W""")
    wait_ge(a,D_KV,128,2,soff=53); wait_ge(a,D_Q,16,2,soff=53); wait_ge(a,D_OB,16,2,soff=53); wait_ge(a,D_PROG,"s67",2,sleep=2)
    a("L_FB_W:")
    if DIAG: stamp(a,8,2,0,52,24)
    a(f"s_barrier\ns_add_u32 s64, s63, s{sWAVE}\ns_cmp_ge_u32 s{sWAVE}, s62\ns_cbranch_scc1 L_FB_X")
    xattn(a)
    a("L_FB_X:\ns_lshl_b32 s53, s52, 2\ns_add_u32 s53, s53, s50\ns_lshl_b32 s53, s53, 2")
    signal(a,D_XA,2,soff=53)
    wait_wg(a,D_XA,32,2,soff=53,sleep=1)
    if DIAG: stamp(a,9,2,0,52,24)
    B=48; ACC=16
    a(f"""v_lshlrev_b32 v2, 4, v{LANE}
    s_lshl_b32 s39, s{sWAVE}, 13
    v_add_u32 v3, s39, v2
    v_add_u32 v3, 0x10000, v3
    s_lshl_b32 s39, s{sWAVE}, 12
    v_add_u32 v4, s39, v2
    s_lshl_b32 s39, s{sWAVE}, 10
    v_add_u32 v5, s39, v2
    v_and_b32 v6, 31, v{LANE}
    v_lshrrev_b32 v7, 5, v{LANE}
    v_lshlrev_b32 v7, 3, v7
    v_lshl_add_u32 v6, v6, 11, v7
    s_lshl_b32 s39, s{sWAVE}, 4
    s_lshl_b32 s43, s51, 6
    s_add_u32 s39, s39, s43
    v_add_u32 v6, s39, v6""")
    for i in range(1,8): a(f"v_add_u32 v{7+i}, {i*4096}, v2")
    def setb(seg):
        a(f"s_lshl_b32 s39, s{seg}, 18\ns_lshl_b32 s43, s{sWAVE}, 15\ns_add_u32 s39, s39, s43"); base(a,56,sWS,OA,soff=39)
        a("s_lshr_b32 s39, s39, 2"); base(a,58,sWS,OB,soff=39)
    def ld(k,slot):
        kk=k if k<32 else k-32; v=2 if kk<4 else 7+kk//4
        a(f"global_load_dwordx4 {vr(B+4*slot)}, v{v}, s[{56 if k<32 else 58}:{57 if k<32 else 59}] offset:{(kk%4)*1024} sc1")
    setb(63)
    for k in range(16): ld(k,k)
    a("s_mov_b32 s64, 0\nL_FS:")
    for half in range(2):
        for ks in range(4): a(f"ds_read_b128 {vr(32+4*ks)}, v3 offset:{ks*1024}")
        for k in range(40):
            slot=(k+8*half)%16
            if k in (32,36): a("s_waitcnt lgkmcnt(0)")
            w=ar(4*k) if k<32 else vr(32+4*(k%4))
            a(f"s_waitcnt vmcnt(15)\nv_mfma_f32_32x32x16_bf16 {vr(ACC,16)}, {w}, {vr(B+4*slot)}, {'0' if k==0 else vr(ACC,16)}")
            if k==35:
                a("s_nop 3")
                for ks in range(4): a(f"ds_read_b128 {vr(32+4*ks)}, v3 offset:{(4+ks)*1024}")
            if k==24:
                a("s_add_u32 s65, s64, 1\ns_cmp_lt_u32 s65, s62\ns_cselect_b32 s65, s65, s64\ns_add_u32 s65, s65, s63"); setb(65)
            ld((k+16)%40,slot)
        a.nop(12)
        red8_write(a,ACC,4,half*0x8000)
        a(f"s_waitcnt lgkmcnt(0)\ns_barrier\ns_cmp_ge_u32 s{sWAVE}, 4\ns_cbranch_scc1 L_FN{half}")
        for w in range(4): a(f"ds_read_b128 {vr(16+4*w)}, v5 offset:{half*0x8000+w*4096}\nds_read_b128 {vr(112+4*w)}, v5 offset:{half*0x8000+(w+4)*4096}")
        a("s_add_u32 s39, s63, s64\ns_lshl_b32 s39, s39, 16"); base(a,60,sOUT,soff=39)
        a("s_waitcnt lgkmcnt(0)")
        for i in range(16): a(f"v_add_f32 v{16+i}, v{16+i}, v{112+i}")
        for i in range(8): a(f"v_add_f32 v{16+i}, v{16+i}, v{24+i}")
        for i in range(4): a(f"v_add_f32 v{16+i}, v{16+i}, v{20+i}")
        a(f"v_cvt_pk_bf16_f32 v112, v16, v17\nv_cvt_pk_bf16_f32 v113, v18, v19\nglobal_store_dwordx2 v6, v[112:113], s[60:61]\nL_FN{half}:")
        a("s_add_u32 s64, s64, 1\ns_cmp_ge_u32 s64, s62\ns_cbranch_scc1 L_FD" if half==0 else "s_add_u32 s64, s64, 1\ns_cmp_lt_u32 s64, s62\ns_cbranch_scc1 L_FS")
    a("L_FD:\ns_waitcnt vmcnt(0)")
    if DIAG: stamp(a,10,2,0,52,24)
    a("s_add_u32 s52, s52, 1\ns_cmp_lt_u32 s52, 5\ns_cbranch_scc1 L_FB")
```

```python
import sys
from common import *
import worker1,worker2,chain
DIAG=int(sys.argv[2]) if len(sys.argv)>2 else 0
a=Asm()
hdr=open(f'cdna_kernels/{NAME}.s.ref').read().split('\n')
hdr=[l for l in hdr if l.startswith(';') and '@launch' not in l and 'Override' not in l and 'grid=ceil' not in l]
a(f"""s_cmp_ge_u32 s2, 256
s_cbranch_scc1 L_END
s_load_dwordx8 s[4:11], s[0:1], 0
s_load_dwordx4 s[12:15], s[0:1], 32
s_load_dwordx8 s[16:23], s[0:1], 64
s_load_dwordx8 s[24:31], s[0:1], 96
s_getreg_b32 s{sXCC}, hwreg(HW_REG_XCC_ID, 0, 3)
v_lshrrev_b32 v1, 6, v0
v_and_b32 v0, 63, v0
v_readfirstlane_b32 s{sWAVE}, v1
s_lshl_b32 s39, s{sXCC}, 2
v_mov_b32 v2, s39
v_mov_b32 v3, 1
v_mov_b32 v4, {D_TOTAL}
v_mov_b32 v8, 0
s_waitcnt lgkmcnt(0)
s_cmp_lg_u32 s{sWAVE}, 0
s_cbranch_scc1 L_S1
s_mov_b64 exec, 1
global_atomic_add v6, v2, v3, {sp(sDBG)} sc0 sc1
s_waitcnt vmcnt(0)
global_atomic_add v7, v4, v3, {sp(sDBG)} sc0 sc1
s_waitcnt vmcnt(0)
ds_write_b64 v8, v[6:7]
s_mov_b64 exec, -1""")
wait_ge(a,D_TOTAL,256,2,sleep=1)
a(f"""v_and_b32 v2, 7, v0
v_lshlrev_b32 v2, 2, v2
global_load_dword v3, v2, {sp(sDBG)} sc1
s_waitcnt vmcnt(0)
v_cmp_ne_u32 vcc, 32, v3
s_nop 1
s_cmp_lg_u64 vcc, 0
s_cselect_b32 s39, 1, 0
v_mov_b32 v3, s39
ds_write_b32 v8, v3 offset:8
s_waitcnt lgkmcnt(0)
L_S1:
s_barrier
ds_read_b96 v[4:6], v8
s_waitcnt lgkmcnt(0)
v_readfirstlane_b32 s{sTK}, v4
v_readfirstlane_b32 s{sG}, v5
v_readfirstlane_b32 s{sSLOW}, v6
s_barrier
s_lshl_b32 s40, s{sXCC}, 5
s_add_u32 s40, s40, s{sTK}
s_cmp_eq_u32 s{sSLOW}, 0
s_cselect_b32 s40, s40, s{sG}
s_and_b32 s40, s40, 255
s_and_b32 s{sROLE}, s40, 127""")
if DIAG: stamp(a,0,2)
a(f"""s_cmp_lt_u32 s40, 128
s_cbranch_scc1 L_CHAIN
s_lshr_b32 s50, s{sROLE}, 5
s_and_b32 s51, s{sROLE}, 31""")
worker1.kvb_gate(a)
if DIAG: stamp(a,1,2)
worker1.gemm1(a,DIAG)
if DIAG: stamp(a,2,2)
worker2.battn(a)
if DIAG: stamp(a,3,2)
worker2.final(a,DIAG)
if DIAG: stamp(a,4,2)
a("s_branch L_END\nL_CHAIN:\ns_setprio 3")
chain.mbinit(a)
worker1.kv0(a)
if DIAG: stamp(a,3,2)
chain.chain(a,DIAG)
a("L_END:\ns_endpgm")
out='\n'.join(hdr)+f"""
; @launch grid=(256,1,1) block=(512,1,1) lds=133120
.amdgcn_target "amdgcn-amd-amdhsa--gfx950"
.text
.globl {NAME}_kernel
.p2align 8
.type {NAME}_kernel,@function
{NAME}_kernel:
"""+a.text()+f""".section .rodata,"a"
.p2align 6
.amdhsa_kernel {NAME}_kernel
  .amdhsa_next_free_vgpr 256
  .amdhsa_next_free_sgpr 102
  .amdhsa_accum_offset 128
  .amdhsa_group_segment_fixed_size 0
  .amdhsa_kernarg_size 128
  .amdhsa_user_sgpr_count 2
  .amdhsa_user_sgpr_kernarg_segment_ptr 1
  .amdhsa_system_sgpr_workgroup_id_x 1
.end_amdhsa_kernel
"""
open(sys.argv[1],'w').write(out)
```

```python
from common import *
from worker1 import LANE
from worker2 import fbits, xhalf, maxn
import math
NLO,NHI=0x00ff00ff,0xff00ff00
import os
DL=[int(x) for x in os.environ.get('DL','2,3,9,3,2').split(',')]
def poll(a,loads,regs,vt,dl=0):
    L=a.lab('P')
    if dl: a(f's_sleep {dl}')
    a(f"s_mov_b32 s{sSPIN}, {SPINMAX}\n{L}:")
    spin_check(a)
    for t in loads: a(t+" sc1")
    a("s_waitcnt vmcnt(0)")
    regs=list(regs); h=len(regs)//2
    for t,rs in ((vt,regs[:h]),(vt+1,regs[h:])):
        a(f"v_max3_u32 v{t}, v{rs[0]}, v{rs[1]}, v{rs[2]}")
    for k in range(3,h,2):
        for t,rs in ((vt,regs[:h]),(vt+1,regs[h:])):
            a(f"v_max3_u32 v{t}, v{t}, v{rs[k]}, v{rs[k+1]}" if k+1<h else f"v_max_u32 v{t}, v{t}, v{rs[k]}")
    a(f"v_max_u32 v{vt}, v{vt}, v{vt+1}\nv_cmp_eq_u32 vcc, -1, v{vt}\ns_nop 0\ns_cbranch_vccnz {L}")
def slotbase(a,d,add,off,extra):
    a(f"s_add_u32 s39, s60, {add}\ns_and_b32 s39, s39, 3\ns_lshl_b32 s39, s39, 19\ns_add_u32 s39, s39, s{extra}")
    base(a,d,sWS,MBOX+off,soff=39)
TS2=85*MB
def cst(a,D,k):
    if D>1: a(f"s_memrealtime s[{80+2*k}:{81+2*k}]")
def cdump(a,D,vt):
    if D<2: return
    a(f"s_lshl_b32 s39, s{sROLE}, 3\ns_add_u32 s39, s39, s{sWAVE}\ns_lshl_b32 s39, s39, 6\ns_add_u32 s39, s39, s60\ns_lshl_b32 s39, s39, 5\ns_add_u32 s39, s39, {TS2}\ns_waitcnt lgkmcnt(0)")
    for h in range(2):
        for i in range(4): a(f"v_mov_b32 v{vt+i}, s{80+2*(4*h+i) if 4*h+i<7 else 80}")
        a(f"v_mov_b32 v{vt+4}, s39\ns_mov_b64 exec, 1\nglobal_store_dwordx4 v{vt+4}, {vr(vt)}, {sp(sWS)} offset:{16*h}\ns_mov_b64 exec, -1\ns_nop 1")
def dpp(op,d,s0,s1,ctl,bank=0xf,bc=False):
    return f"{op}_dpp v{d}, v{s0}" + (f", v{s1}" if s1 is not None else "") + f" {ctl} row_mask:0xf bank_mask:{hex(bank)}" + (" bound_ctrl:0" if bc else "")
def merge4(a,E0,O0,E1,O1):
    for i in range(4): a(dpp("v_add_f32",E0+i,O0+i,E0+i,"row_shl:8",0x3))
    for i in range(4): a(dpp("v_add_f32",E0+i,E1+i,O1+i,"row_shr:8",0xc))
def pkadd(a,d,x,y,n):
    for i in range(0,n,2): a(f"v_pk_add_f32 {vr(d+i,2)}, {vr(x+i,2)}, {vr(y+i,2)}")
def mbinit(a):
    a(f"""s_cmp_lt_u32 s{sWAVE}, 4
    s_cbranch_scc1 L_MI
    s_lshl_b32 s70, s{sROLE}, 11
    s_lshl_b32 s71, s{sROLE}, 9
    s_lshl_b32 s72, s{sROLE}, 10
    s_and_b32 s60, s{sWAVE}, 3""")
    a(f"v_lshlrev_b32 v1, 4, v{LANE}\nv_mov_b32 v4, -1\nv_mov_b32 v5, -1\nv_mov_b32 v6, -1\nv_mov_b32 v7, -1\nv_and_b32 v2, 0x1ff, v1")
    slotbase(a,56,0,SC_O,70); a("global_store_dwordx4 v1, v[4:7], s[56:57] sc1\nglobal_store_dwordx4 v2, v[4:7], s[56:57] offset:1024 sc1")
    slotbase(a,56,0,OM_O,71); a("global_store_dwordx4 v2, v[4:7], s[56:57] sc1")
    slotbase(a,56,0,PM_O,72); a("global_store_dwordx4 v1, v[4:7], s[56:57] sc1")
    slotbase(a,56,0,MM_O,71); a("global_store_dwordx4 v2, v[4:7], s[56:57] sc1")
    a("s_nop 1\nL_MI:")
def chain(a,DIAG):
    a(f"""s_lshr_b32 s50, s{sROLE}, 5
    s_and_b32 s51, s{sROLE}, 31
    s_lshl_b32 s55, s{sWAVE}, 14
    s_lshl_b32 s70, s{sROLE}, 11
    s_lshl_b32 s71, s{sROLE}, 9
    s_lshl_b32 s72, s{sROLE}, 10
    s_lshl_b32 s73, s50, 14
    s_mov_b32 s74, {NLO}
    s_mov_b32 s75, {NLO}
    s_mov_b32 s76, {NHI}
    s_mov_b32 s77, {NHI}
    s_mov_b32 s78, 0
    s_mov_b32 s79, -1
    s_mov_b32 s60, 0
    v_bfe_u32 v58, v{LANE}, 2, 2
    v_lshrrev_b32 v59, 4, v{LANE}
    v_lshl_add_u32 v58, v59, 2, v58
    v_lshlrev_b32 v58, 6, v58
    v_add_u32 v58, s55, v58
    v_and_b32 v60, 3, v{LANE}
    v_lshl_add_u32 v61, v60, 3, v58
    v_and_b32 v60, 1, v{LANE}
    v_lshl_add_u32 v58, v60, 3, v58
    v_bfe_u32 v60, v{LANE}, 1, 1
    v_lshl_add_u32 v58, v60, 5, v58
    v_and_b32 v60, 7, v{LANE}
    v_lshlrev_b32 v60, 4, v60
    v_lshl_add_u32 v55, v59, 7, v60
    v_bfe_u32 v62, v{LANE}, 3, 1
    v_lshl_add_u32 v56, v62, 9, v55
    s_and_b32 s54, s{sWAVE}, 3
    s_lshl_b32 s39, s54, 12
    v_add_u32 v56, s39, v56
    s_cmp_ge_u32 s{sWAVE}, 4
    s_cbranch_scc1 L_C_B""")
    def W(tile,ks):
        i=(tile*8+ks)*4
        return ('a',i) if i<128 else ('v',i-64)
    a(f"s_lshl_b32 s39, s{sWAVE}, 21\ns_lshl_b32 s43, s{sROLE}, 6\ns_add_u32 s43, s43, s39")
    def rdw(m):
        for T in range(2):
            for ks in range(8):
                k,r=W(2*m+T,ks)
                for h in range(2):
                    a(f"ds_read_b64_tr_b16 {k}[{r+2*h}:{r+2*h+1}], v{58 if m<2 else 61} offset:{(32*ks+16*h)*64+(16 if m<2 else 32)*T}")
        a("s_waitcnt lgkmcnt(0)")
    rdw(1); base(a,56,sWQ,soff=43); slab_dma(a,56,8192,256,55,2,LANE)
    a("v_add_u32 v61, 0x10000, v61\ns_waitcnt vmcnt(0)"); rdw(0)
    a(f"""v_and_b32 v60, 7, v{LANE}
    v_lshlrev_b32 v60, 11, v60
    v_lshl_add_u32 v60, v59, 3, v60
    v_lshl_add_u32 v63, v62, 6, v60
    s_lshl_b32 s39, s{sWAVE}, 9""")
    base(a,56,sMEM0,soff=39)
    a(f"s_mul_i32 s39, s{sWAVE}, 3072\nv_lshl_add_u32 v57, v{LANE}, 4, s39\ns_barrier"); rdw(2); a("s_barrier")
    for i in range(4): a(f"global_load_dwordx2 {vr(4*i,2)}, v63, s[56:57] offset:{128*i}\nglobal_load_dwordx2 {vr(4*i+2,2)}, v63, s[56:57] offset:{128*i+32}")
    a("s_waitcnt vmcnt(0)\ns_branch L_CQ_M\nL_CQ:")
    poll(a,[f"global_load_dwordx4 {vr(4*i)}, v56, s[56:57] offset:{1024*i}" for i in range(4)],range(16),58,DL[3])
    a("L_CQ_M:"); cst(a,DIAG,0)
    def mm(tiles):
        for ks in range(8):
            for tile in tiles:
                k,r=W(tile,ks); w=f"{k}[{r}:{r+3}]"; d=vr(16+8*(tile%4)+4*(ks%2)); c='0' if ks<2 else d; b=vr(4*(ks//2))
                a(f"v_mfma_f32_16x16x32_bf16 {d}, {w}, {b}, {c}" if tile<4 else f"v_mfma_f32_16x16x32_bf16 {d}, {b}, {w}, {c}")
    mm(range(4)); a.nop(6)
    merge4(a,16,20,24,28); a("ds_write_b128 v57, v[16:19]")
    merge4(a,32,36,40,44); a("ds_write_b128 v57, v[32:35] offset:1024")
    cst(a,DIAG,1)
    a("s_waitcnt lgkmcnt(0)\ns_barrier")
    mm((4,5)); a.nop(8)
    for i in range(4): a(f"v_permlane32_swap_b32 v{20+i}, v{24+i}")
    for i in range(4): a(f"v_cndmask_b32 v{16+i}, v{16+i}, v{28+i}, s[78:79]")
    for i in range(4): a(f"v_cndmask_b32 v{24+i}, v{24+i}, v{20+i}, s[78:79]")
    pkadd(a,16,16,24,4)
    a("ds_write_b128 v57, v[16:19] offset:2048\ns_waitcnt lgkmcnt(0)\ns_barrier\ns_cmp_eq_u32 s60, 63\ns_cbranch_scc1 L_END"); cdump(a,DIAG,32)
    a("s_add_u32 s60, s60, 1"); slotbase(a,56,0,MM_O,73)
    a("s_barrier\ns_barrier\ns_barrier\ns_branch L_CQ")
    a("L_C_B:")
    for T in range(2):
        for ks in range(8):
            for h in range(2): a(f"ds_read_b64_tr_b16 {ar((T*8+ks)*4+2*h,2)}, v61 offset:{(32*ks+16*h)*64+32*T}")
    a(f"s_lshl_b32 s39, s54, 21\ns_lshl_b32 s43, s{sROLE}, 6\ns_add_u32 s43, s43, s39\ns_waitcnt lgkmcnt(0)")
    base(a,56,sWV,soff=43); slab_dma(a,56,8192,256,55,2,LANE)
    a(f"v_lshlrev_b32 v1, 4, v{LANE}\nv_mov_b32 v4, -1\nv_mov_b32 v5, -1\nv_mov_b32 v6, -1\nv_mov_b32 v7, -1\nv_and_b32 v2, 0x1ff, v1\ns_mov_b32 s60, s54")
    a("s_mov_b32 s60, 0")
    a(f"""s_waitcnt lgkmcnt(0)
    v_mov_b32 v8, v55
    v_mov_b32 v9, v56
    s_lshl_b32 s39, s54, 10
    s_add_u32 s39, s39, 0x4000
    v_add_u32 v10, s39, v1
    v_lshrrev_b32 v13, 5, v{LANE}
    v_lshlrev_b32 v13, 10, v13
    v_bfe_u32 v14, v{LANE}, 4, 1
    v_lshl_add_u32 v13, v14, 9, v13
    v_and_b32 v14, 7, v{LANE}
    v_lshl_add_u32 v14, v62, 4, v14
    v_lshl_add_u32 v11, v14, 4, v13
    v_and_b32 v14, 15, v{LANE}
    v_lshl_add_u32 v12, v14, 4, v13
    v_lshlrev_b32 v14, 4, v14
    v_bfe_u32 v13, v{LANE}, 4, 1
    v_lshl_add_u32 v13, v13, 3, v14
    v_lshrrev_b32 v14, 5, v{LANE}
    v_lshl_add_u32 v13, v14, 8, v13
    v_lshl_add_u32 v14, v62, 3, v55
    v_lshlrev_b32 v15, 3, v{LANE}
    v_mov_b32 v3, 0xff800000
    s_waitcnt vmcnt(0)
    s_barrier
    s_cmp_lg_u32 s54, 0
    s_cbranch_scc1 L_C_I""")
    wait_ge(a,D_CINIT,128,16,sleep=1)
    KX,VX=64,72
    def prefetch():
        S=a.lab('K')
        a(f"s_and_b32 s39, s61, 7\ns_cmp_lg_u32 s39, 0\ns_cbranch_scc1 {S}\ns_lshr_b32 s62, s61, 1")
        wait_ge(a,D_KV,128,16,sleep=1,soff=62)
        a(f"{S}:\ns_lshl_b32 s39, s61, 18\ns_add_u32 s43, s70, s39")
        base(a,56,sWS,KF,soff=43); base(a,58,sWS,VF,soff=43)
        a(f"""global_load_dwordx4 {vr(KX)}, v11, s[56:57] sc1
        global_load_dwordx4 {vr(KX+4)}, v11, s[56:57] offset:128 sc1
        global_load_dwordx4 {vr(VX)}, v12, s[58:59] sc1
        global_load_dwordx4 {vr(VX+4)}, v12, s[58:59] offset:256 sc1""")
    def abases(add):
        slotbase(a,56,add,SC_O,70); slotbase(a,58,add,OM_O,71)
        for p in range(1,4):
            a(f"s_xor_b32 s43, s{sROLE}, {p}\ns_lshl_b32 s43, s43, 11"); slotbase(a,62+2*p,add,SC_O,43)
    a("s_mov_b32 s61, 0"); prefetch()
    a("L_C_I:"); abases(0); a("s_barrier")
    if DIAG: stamp(a,1,16,4)
    def rdqk(which):
        for kq in range(4):
            for p in which: a(f"ds_read_b128 {vr(16+8*kq+4*p)}, v1 offset:{kq*3072+1024*p}")
    def rdv():
        for kq in range(4): a(f"ds_read_b128 {vr(48+4*kq)}, v1 offset:{kq*3072+2048}")
        a("s_waitcnt lgkmcnt(0)"); pkadd(a,48,48,52,4); pkadd(a,56,56,60,4); pkadd(a,48,48,56,4)
        a("v_cvt_pk_bf16_f32 v44, v48, v49\nv_cvt_pk_bf16_f32 v45, v50, v51")
    a("L_CW:\ns_barrier\ns_cmp_eq_u32 s54, 0\ns_cbranch_scc1 L_CW_A\ns_cmp_eq_u32 s54, 2\ns_cbranch_scc1 L_CW_K\ns_barrier\ns_branch L_CW_O\nL_CW_K:")
    rdqk((1,))
    a("s_lshl_b32 s39, s60, 16\ns_add_u32 s43, s39, s71"); base(a,64,sWS,KM,soff=43); base(a,66,sWS,VM,soff=43)
    a("s_waitcnt lgkmcnt(0)"); pkadd(a,20,20,28,4); pkadd(a,36,36,44,4); pkadd(a,20,20,36,4)
    a("v_cvt_pk_bf16_f32 v28, v20, v21\nv_cvt_pk_bf16_f32 v29, v22, v23\nv_mov_b32 v40, v28\nv_mov_b32 v41, v29\ns_barrier")
    rdv()
    a("s_cmp_eq_u32 s60, 63\ns_cbranch_scc1 L_CA_F\ns_branch L_CW_O\nL_CW_A:")
    rdqk((0,1))
    a("s_cmp_eq_u32 s60, 63\ns_cbranch_scc1 L_CA_X\ns_waitcnt lgkmcnt(4)"); pkadd(a,16,16,24,8)
    a("s_waitcnt lgkmcnt(0)"); pkadd(a,32,32,40,8); pkadd(a,16,16,32,8)
    a("""v_cvt_pk_bf16_f32 v24, v16, v17
    v_cvt_pk_bf16_f32 v25, v18, v19
    v_cvt_pk_bf16_f32 v26, v16, v17
    v_cvt_pk_bf16_f32 v27, v18, v19
    v_cvt_pk_bf16_f32 v28, v20, v21
    v_cvt_pk_bf16_f32 v29, v22, v23""")
    a(dpp("v_mov_b32",26,24,None,"row_shl:8",0x3)); a(dpp("v_mov_b32",27,25,None,"row_shl:8",0x3))
    a(dpp("v_mov_b32",24,24,None,"row_shr:8",0xc)); a(dpp("v_mov_b32",25,25,None,"row_shr:8",0xc))
    a(dpp("v_mov_b32",30,28,None,"row_shl:8",bc=True)); a(dpp("v_mov_b32",31,29,None,"row_shl:8",bc=True))
    a(f"""s_waitcnt vmcnt(0)
    v_mfma_f32_16x16x32_bf16 v[36:39], {vr(KX)}, v[24:27], 0
    v_mfma_f32_16x16x32_bf16 v[40:43], {vr(KX+4)}, v[24:27], 0
    v_mfma_f32_16x16x32_bf16 v[32:35], v[28:31], v[24:27], 0
    s_nop 6""")
    for i in range(4): a(f"v_cndmask_b32 v{36+i}, v{36+i}, v{40+i}, s[76:77]")
    for i in range(2): a(f"v_cndmask_b32 v{40+i}, v{32+i}, v{34+i}, s[76:77]")
    st_intra(a,["global_store_dwordx4 v1, v[36:39], s[56:57]","global_store_dwordx2 v15, v[40:41], s[56:57] offset:1024"])
    cst(a,DIAG,0)
    a("s_barrier"); rdv()
    a("""v_mov_b32 v46, v44
    v_mov_b32 v47, v45
    v_mov_b32 v48, v44
    v_mov_b32 v49, v45
    s_nop 1
    v_permlane32_swap_b32 v46, v48
    v_permlane32_swap_b32 v47, v49""")
    L=[]
    for p in range(3): L+= [f"global_load_dwordx4 {vr(80+6*p)}, v1, s[{64+2*p}:{65+2*p}]",f"global_load_dwordx2 {vr(84+6*p,2)}, v15, s[{64+2*p}:{65+2*p}] offset:1024"]
    poll(a,L,range(80,98),16,DL[0])
    cst(a,DIAG,1)
    pkadd(a,36,36,80,6); pkadd(a,86,86,92,6); pkadd(a,36,36,86,6)
    a("v_cndmask_b32 v40, v40, v3, s[78:79]\nv_cndmask_b32 v41, v41, v3, s[78:79]")
    def x8(op,v):
        a(f"v_mov_b32 v17, v{v}\ns_nop 1\nv_permlane32_swap_b32 v17, v{v}\ns_nop 0\n{op} v{v}, v{v}, v17\nv_mov_b32 v17, v{v}\ns_nop 1\nv_permlane16_swap_b32 v17, v{v}\ns_nop 0\n{op} v{v}, v{v}, v17\ns_nop 1")
        a(dpp(op,v,v,v,"row_ror:8"))
    a("v_max3_f32 v16, v36, v37, v38\nv_max3_f32 v18, v39, v40, v41\nv_max_f32 v16, v16, v18"); x8("v_max_f32",16)
    a(f"s_mov_b32 s39, {fbits(128**-0.5*math.log2(math.e))}\nv_mul_f32 v16, s39, v16")
    for i in range(6): a(f"v_fma_f32 v{36+i}, v{36+i}, s39, -v16")
    for i in range(6): a(f"v_exp_f32 v{36+i}, v{36+i}")
    a("v_cvt_pk_bf16_f32 v52, v36, v37\nv_cvt_pk_bf16_f32 v53, v38, v39\nv_cvt_pk_bf16_f32 v50, v40, v41\nv_add_f32 v16, v36, v37\nv_add_f32 v18, v38, v39")
    a(dpp("v_mov_b32",54,52,None,"row_shl:8",bc=True)); a(dpp("v_mov_b32",55,53,None,"row_shl:8",bc=True)); a(dpp("v_mov_b32",51,50,None,"row_shl:8",bc=True))
    a(f"""v_add_f32 v16, v16, v40
    v_add_f32 v18, v18, v41
    v_mfma_f32_16x16x32_bf16 v[20:23], {vr(VX)}, v[52:55], 0
    v_mfma_f32_16x16x32_bf16 v[24:27], {vr(VX+4)}, v[52:55], 0
    v_add_f32 v16, v16, v18
    v_mfma_f32_16x16x16_bf16 v[20:23], v[46:47], v[50:51], v[20:23]
    v_mfma_f32_16x16x16_bf16 v[24:27], v[48:49], v[50:51], v[24:27]""")
    x8("v_add_f32",16)
    a("v_rcp_f32 v16, v16\ns_nop 0")
    for i in range(8): a(f"v_mul_f32 v{20+i}, v16, v{20+i}")
    for i in range(4): a(f"v_cvt_pk_bf16_f32 v{28+i}, v{20+2*i}, v{21+2*i}")
    for i in range(4): a(f"v_min_u32 v{28+i}, -2, v{28+i}")
    a("s_mov_b64 exec, s[74:75]")
    st_intra(a,["global_store_dwordx4 v8, v[28:31], s[58:59]"])
    cst(a,DIAG,2)
    a("s_mov_b64 exec, -1\nL_CW_O:\ns_cmp_eq_u32 s60, 63\ns_cbranch_scc1 L_END")
    slotbase(a,56,0,OM_O,73); slotbase(a,58,0,PM_O,72)
    a("s_barrier")
    poll(a,[f"global_load_dwordx4 {vr(80+4*i)}, v9, s[56:57] offset:{1024*i}" for i in range(4)],range(80,96),16,DL[1])
    cst(a,DIAG,3)
    for ks in range(8):
        for T in range(2):
            d=vr(20+8*T+4*(ks%2)); a(f"v_mfma_f32_16x16x32_bf16 {d}, {ar((T*8+ks)*4)}, {vr(80+4*(ks//2))}, {'0' if ks<2 else d}")
    a.nop(7)
    merge4(a,20,24,28,32)
    a(f"ds_write_b128 v10, v[20:23]\ns_waitcnt lgkmcnt(0)\ns_barrier\ns_cmp_eq_u32 s54, 1\ns_cbranch_scc1 L_CR\ns_sleep {DL[4]}\ns_cmp_eq_u32 s54, 0\ns_cbranch_scc1 L_CP\ns_cmp_eq_u32 s54, 2\ns_cbranch_scc1 L_CK")
    a(f"s_cmp_lg_u32 s{sROLE}, 0\ns_cbranch_scc1 L_CNB"); add1(a,D_PROG,22)
    kvst="global_store_dwordx2 v14, v[40:41], s[64:65] sc1\nglobal_store_dwordx2 v13, v[44:45], s[66:67] sc1"
    a("s_branch L_CNB\nL_CK:\n"+kvst+"\ns_branch L_CNB\nL_CP:")
    slotbase(a,56,2,SC_O,70); slotbase(a,58,2,OM_O,71)
    st_intra(a,["global_store_dwordx4 v1, v[4:7], s[56:57]","global_store_dwordx4 v2, v[4:7], s[56:57] offset:1024","global_store_dwordx4 v2, v[4:7], s[58:59]"])
    a("s_add_u32 s61, s60, 1"); prefetch(); abases(1)
    a("L_CNB:\ns_barrier\ns_branch L_CN\nL_CR:")
    for w in range(4): a(f"ds_read_b128 {vr(16+4*w)}, v1 offset:{0x4000+w*1024}")
    a("s_waitcnt lgkmcnt(0)"); pkadd(a,16,16,20,4); pkadd(a,24,24,28,4); pkadd(a,16,16,24,4)
    a("global_store_dwordx4 v1, v[16:19], s[58:59] sc1"); cst(a,DIAG,4)
    slotbase(a,56,2,PM_O,72); slotbase(a,58,3,MM_O,71)
    a("global_store_dwordx4 v1, v[4:7], s[56:57] sc1")
    st_intra(a,["global_store_dwordx4 v2, v[4:7], s[58:59]"])
    for p in range(1,4):
        a(f"s_xor_b32 s43, s{sROLE}, {32*p}\ns_lshl_b32 s43, s43, 10"); slotbase(a,62+2*p,0,PM_O,43)
    slotbase(a,56,1,MM_O,71)
    poll(a,[f"global_load_dwordx4 {vr(32+4*p)}, v1, s[{64+2*p}:{65+2*p}]" for p in range(3)],range(32,44),20,DL[2])
    cst(a,DIAG,5)
    pkadd(a,16,16,32,4); pkadd(a,36,36,40,4); pkadd(a,16,16,36,4)
    a("v_cvt_pk_bf16_f32 v20, v16, v17\nv_cvt_pk_bf16_f32 v21, v18, v19\nv_min_u32 v20, -2, v20\nv_min_u32 v21, -2, v21")
    st_intra(a,["global_store_dwordx2 v14, v[20:21], s[56:57]"])
    cst(a,DIAG,6)
    a("s_barrier")
    a("L_CN:"); cdump(a,DIAG,116)
    a("s_add_u32 s60, s60, 1\ns_branch L_CW\nL_CA_X:\ns_barrier\ns_branch L_END\nL_CA_F:\n"+kvst+"\ns_waitcnt vmcnt(0)")
    add1(a,D_PROG,16)
    if DIAG: stamp(a,2,16,6)
    a("s_branch L_END")
```

```python
NAME="gated_mix__memory_aug_recurrent_mem_tr__grouped_kv_mqa__prompt"
MB=1<<20
QF,KF,VF,OA,OB=0,16*MB,32*MB,48*MB,64*MB
KBF=68*MB; VBF=KBF+128*1024; GATE=KBF+256*1024
KM,VM=72*MB,76*MB
QB=88*MB
XB=96*MB
MBOX=80*MB; SLOT=512*1024
SC_O,OM_O,PM_O,MM_O=0,256*1024,320*1024,448*1024
TS=84*MB
D_CNT,D_TOTAL,D_CINIT,D_KVB,D_PROG,D_KV,D_Q,D_OB,D_XA=0,32,36,40,44,64,96,128,160
sX,sMEM0,sWQ,sWK,sWV,sWO,sBWQ,sBWK,sBWV,sBWO,sGW,sOUT,sDBG,sWS=4,6,8,10,12,14,16,18,20,22,24,26,28,30
sSLOW,sROLE,sWAVE,sXCC,sTK,sG,sSPIN=32,33,34,35,36,37,38
SPINMAX=1<<19
class Asm:
    def __init__(s): s.l=[]; s.n=0
    def __call__(s,t):
        for x in t.strip('\n').split('\n'):
            x=x.strip()
            if x: s.l.append(x if x.endswith(':') else '  '+x)
    def lab(s,p='L'):
        s.n+=1; return f"{p}{s.n}"
    def nop(s,n):
        while n>0:
            k=min(n,16); s(f"s_nop {k-1}"); n-=k
    def text(s): return '\n'.join(s.l)+'\n'
def sp(r): return f"s[{r}:{r+1}]"
def vr(r,n=4): return f"v[{r}:{r+n-1}]"
def ar(r,n=4): return f"a[{r}:{r+n-1}]"
def base(a,d,src,off=None,soff=None):
    if soff is not None:
        a(f"s_add_u32 s{d}, s{src}, s{soff}\ns_addc_u32 s{d+1}, s{src+1}, 0"); src=d
    if off:
        a(f"s_add_u32 s{d}, s{src}, {off}\ns_addc_u32 s{d+1}, s{src+1}, 0"); src=d
    if src!=d: a(f"s_mov_b64 {sp(d)}, {sp(src)}")
def spin_check(a):
    a(f"s_sub_u32 s{sSPIN}, s{sSPIN}, 1\ns_cbranch_scc1 L_END")
def wait_ge(a,off,tgt,vt,sleep=4,soff=None,st=39):
    L=a.lab('W'); D=a.lab('WD')
    if soff is None: a(f"v_mov_b32 v{vt}, {off}")
    else: a(f"s_add_u32 s{st}, s{soff}, {off}\nv_mov_b32 v{vt}, s{st}")
    a(f"""s_mov_b32 s{sSPIN}, {SPINMAX}
    {L}:
    global_load_dword v{vt+1}, v{vt}, {sp(sDBG)} sc1
    s_waitcnt vmcnt(0)
    v_readfirstlane_b32 s{st}, v{vt+1}
    s_cmp_ge_u32 s{st}, {tgt}
    s_cbranch_scc1 {D}
    s_sleep {sleep}""")
    spin_check(a)
    a(f"s_branch {L}\n{D}:")
def wait_wg(a,off,tgt,vt,soff=None,sleep=4):
    S=a.lab('S')
    a(f"s_cmp_lg_u32 s{sWAVE}, 0\ns_cbranch_scc1 {S}")
    wait_ge(a,off,tgt,vt,sleep,soff)
    a(f"{S}:\ns_barrier")
def add1(a,off,vt,soff=None,st=39,val=1):
    if soff is None: a(f"v_mov_b32 v{vt}, {off}")
    else: a(f"s_add_u32 s{st}, s{soff}, {off}\nv_mov_b32 v{vt}, s{st}")
    a(f"""v_mov_b32 v{vt+1}, {val}
    s_mov_b64 exec, 1
    global_atomic_add v{vt}, v{vt+1}, {sp(sDBG)} sc1
    s_mov_b64 exec, -1""")
def signal(a,off,vt,soff=None,val=1):
    S=a.lab('S')
    a(f"s_waitcnt vmcnt(0)\ns_barrier\ns_cmp_lg_u32 s{sWAVE}, 0\ns_cbranch_scc1 {S}")
    add1(a,off,vt,soff,val=val)
    a(f"{S}:")
def stamp(a,idx,vt,cond_wave=0,dyn=None,mul=8):
    S=a.lab('T')
    a(f"""s_cmp_lg_u32 s{sWAVE}, {cond_wave}
    s_cbranch_scc1 {S}
    s_memrealtime s[98:99]
    s_memtime s[100:101]
    s_lshl_b32 s96, s40, 8
    {f's_mul_i32 s97, s{dyn}, {mul}' if dyn else 's_mov_b32 s97, 0'}
    s_add_u32 s96, s96, s97
    s_add_u32 s96, s96, {TS+idx*8}
    v_mov_b32 v{vt}, s96
    s_waitcnt lgkmcnt(0)
    v_mov_b32 v{vt+2}, s98
    v_mov_b32 v{vt+3}, s100
    global_store_dwordx2 v{vt}, v[{vt+2}:{vt+3}], {sp(sWS)}
    {S}:""")
def slab_dma(a,sb,ld,nrows,ldsoff_s,vt,lane,rb=64,setup=True):
    lp=rb//16; R=64//lp
    if setup:
        a(f"v_lshrrev_b32 v{vt}, {lp.bit_length()-1}, v{lane}\nv_and_b32 v{vt+1}, {lp-1}, v{lane}\nv_lshlrev_b32 v{vt+1}, 4, v{vt+1}")
        a(f"s_mov_b32 s39, {ld}\nv_mul_lo_u32 v{vt}, v{vt}, s39\nv_add_u32 v{vt}, v{vt}, v{vt+1}")
        for i in range(1,4): a(f"v_add_u32 v{vt+i}, {i*(R*ld-1024)}, v{vt}")
    a(f"s_mov_b64 s[94:95], {sp(sb)}\ns_mov_b32 m0, s{ldsoff_s}")
    for g in range(nrows//(4*R)):
        if g: a(f"s_add_u32 s94, s94, {4*R*ld}\ns_addc_u32 s95, s95, 0\ns_add_u32 m0, m0, 4096")
        a("s_nop 0")
        for i in range(4): a(f"global_load_lds_dwordx4 v{vt+i}, s[94:95] offset:{i*1024}")
def st_intra(a,txt):
    L=a.lab('F'); E=a.lab('E')
    a(f"s_cmp_eq_u32 s{sSLOW}, 0\ns_cbranch_scc1 {L}")
    for t in txt: a(t+" sc1")
    a(f"s_branch {E}\n{L}:")
    for t in txt: a(t)
    a(f"{E}:")
```

```python
from common import *
import os
EXP=os.environ.get('EXP','')
def gemm(a,TM,TN,WM,swap,ldw,sxb,swb,lane,KS=16,accbase=0,NS=2):
    WN=8//WM; MT=TM//WM//32; NT=TN//WN//32
    XI=TM//64; RB=TN*2; RPI=1024//RB; WI=64//RPI//8
    XSZ=TM*128; ST=XSZ+64*RB
    vXD,vWD,vXR,vWR,vF=2,6,10,14,32
    LPR=RB//16
    a(f"s_and_b32 s41, s{sWAVE}, {WM-1}\ns_lshr_b32 s42, s{sWAVE}, {WM.bit_length()-1}")
    a(f"""v_lshrrev_b32 v16, 3, v{lane}
    s_mul_i32 s43, s{sWAVE}, {8*XI}
    v_add_u32 v16, s43, v16
    v_and_b32 v17, 7, v{lane}""")
    for i in range(XI):
        a(f"""v_add_u32 v18, {8*i}, v16
        v_bfe_u32 v19, v18, 1, 3
        v_xor_b32 v19, v19, v17
        v_lshlrev_b32 v19, 4, v19
        v_lshl_add_u32 v{vXD+i}, v18, 11, v19""")
        if i: a(f"v_subrev_u32 v{vXD+i}, {1024*i}, v{vXD+i}")
    a(f"""v_lshrrev_b32 v16, {LPR.bit_length()-1}, v{lane}
    s_add_u32 s43, s{sWAVE}, s{sWAVE}
    s_lshl_b32 s43, s43, 2
    v_add_u32 v16, s43, v16
    v_and_b32 v17, {LPR-1}, v{lane}
    s_mov_b32 s44, {ldw}
    s_lshl_b32 s48, s44, 6""")
    for i in range(WI):
        a(f"""v_add_u32 v18, {RPI*i}, v16
        v_and_b32 v19, 3, v18
        v_lshlrev_b32 v19, 2, v19
        v_xor_b32 v19, v19, v17
        v_lshlrev_b32 v19, 4, v19
        v_mul_lo_u32 v18, v18, s44
        v_add_u32 v{vWD+i}, v18, v19""")
        if i: a(f"v_subrev_u32 v{vWD+i}, {1024*i}, v{vWD+i}")
    a(f"""v_and_b32 v16, 31, v{lane}
    v_lshrrev_b32 v17, 5, v{lane}
    v_bfe_u32 v18, v16, 1, 3
    s_mul_i32 s43, s41, {MT*32*128}
    v_lshl_add_u32 v16, v16, 7, s43""")
    for ks in range(4):
        a(f"v_add_u32 v19, {2*ks}, v17\nv_xor_b32 v19, v19, v18\nv_lshl_add_u32 v{vXR+ks}, v19, 4, v16")
    a(f"""v_bfe_u32 v16, v{lane}, 2, 2
    v_lshrrev_b32 v17, 5, v{lane}
    v_lshl_add_u32 v17, v17, 3, v16
    v_mul_u32_u24 v17, {RB}, v17
    v_bfe_u32 v18, v{lane}, 4, 1
    v_lshlrev_b32 v18, 5, v18
    v_and_b32 v19, 3, v{lane}
    v_lshl_add_u32 v18, v19, 3, v18
    v_add_u32 v17, v17, v18
    v_add_u32 v17, {XSZ}, v17""")
    for nt in range(NT):
        a(f"s_mul_i32 s43, s42, {NT}\ns_add_u32 s43, s43, {nt}\nv_xor_b32 v19, s43, v16\nv_lshl_add_u32 v{vWR+nt}, v19, 6, v17")
    a(f"s_mul_i32 s45, s{sWAVE}, {XI*1024}\ns_mul_i32 s46, s{sWAVE}, {WI*1024}\ns_add_u32 s46, s46, {XSZ}")
    def dma():
        a("s_mov_b32 m0, s45\ns_nop 0")
        for i in range(XI): a(f"global_load_lds_dwordx4 v{vXD+i}, {sp(sxb)} offset:{i*1024}")
        a("s_mov_b32 m0, s46\ns_nop 0")
        for i in range(WI): a(f"global_load_lds_dwordx4 v{vWD+i}, {sp(swb)} offset:{i*1024}")
        a(f"s_add_u32 s{sxb}, s{sxb}, 128\ns_addc_u32 s{sxb+1}, s{sxb+1}, 0\ns_add_u32 s{swb}, s{swb}, s48\ns_addc_u32 s{swb+1}, s{swb+1}, 0")
        if NS==2: a("s_xor_b32 s45, s45, 0x10000\ns_xor_b32 s46, s46, 0x10000")
        else: a("s_add_u32 s45, s45, 0x8000\ns_add_u32 s46, s46, 0x8000\ns_and_b32 s45, s45, 0x1ffff\ns_and_b32 s46, s46, 0x1ffff")
    FS=(MT+NT)*4
    def reads(ks,st):
        r=[]
        for nt in range(NT):
            for h in range(2): r.append(f"ds_read_b64_tr_b16 {vr(vF+st*FS+MT*4+nt*4+2*h,2)}, v{vWR+nt} offset:{(16*ks+4*h)*RB}")
        for mt in range(MT): r.append(f"ds_read_b128 {vr(vF+st*FS+mt*4)}, v{vXR+ks} offset:{mt*4096}")
        return r
    def mfmas(st,first=False):
        r=[]
        for mt in range(MT):
            for nt in range(NT):
                d=ar(accbase+(mt*NT+nt)*16,16); x=vr(vF+st*FS+mt*4); w=vr(vF+st*FS+MT*4+nt*4)
                c='0' if first else d
                r.append(f"v_mfma_f32_32x32x16_bf16 {d}, {x}, {w}, {c}" if swap else f"v_mfma_f32_32x32x16_bf16 {d}, {w}, {x}, {c}")
        return r
    def inter(m,o):
        if EXP=='nomm': return
        k=0
        for i,x in enumerate(m):
            a(x)
            n=(len(o)*(i+1)+len(m)-1)//len(m)
            while k<n: a(o[k]); k+=1
    tog=[f"v_xor_b32 v{vXR+k}, 0x10000, v{vXR+k}" for k in range(4)]+[f"v_xor_b32 v{vWR+n}, 0x10000, v{vWR+n}" for n in range(NT)]
    if NS>2:
        assert ST==0x8000 and NS==4
        rs=[vXR+k for k in range(4)]+[vWR+n for n in range(NT)]
        tog=[f"v_add_u32 v{r}, 0x8000, v{r}" for r in rs]+[f"v_and_b32 v{r}, 0x1ffff, v{r}" for r in rs]
    a("s_barrier")
    for _ in range(NS): dma()
    a(f"s_waitcnt vmcnt({(NS-1)*(XI+WI)})\ns_barrier")
    for x in reads(0,0): a(x)
    def kstep(first,mode,fly):
        for ks in range(3):
            a("s_waitcnt lgkmcnt(0)")
            inter(mfmas(ks%2,first and ks==0),reads(ks+1,(ks+1)%2))
        a("s_waitcnt lgkmcnt(0)")
        if mode!='last':
            a(f"s_waitcnt vmcnt({fly*(XI+WI)})\ns_barrier")
            for x in tog: a(x)
            for x in reads(0,0): a(x)
            if mode=='dma' and EXP!='nodma': dma()
        for x in (mfmas(1) if EXP!='nomm' else []): a(x)
    kstep(True,'dma',NS-2)
    L=a.lab('G')
    a(f"s_mov_b32 s47, {KS-1-NS}\n{L}:")
    kstep(False,'dma',NS-2)
    a(f"s_sub_u32 s47, s47, 1\ns_cmp_lg_u32 s47, 0\ns_cbranch_scc1 {L}")
    for f in range(NS-2,-1,-1): kstep(False,'nodma',f)
    kstep(False,'last',0)
    a.nop(12)
    return MT,NT
```

```python
from common import *
from gemm import gemm
import math,struct
def fbits(x): return hex(struct.unpack('<I',struct.pack('<f',x))[0])
LANE=0
def pack8(a,dst,src,acc=True,mul=None,tmp=None):
    if acc:
        for i in range(8): a(f"v_accvgpr_read_b32 v{tmp+i}, a{src+i}")
        src=tmp
    if mul is not None:
        for i in range(8): a(f"v_mul_f32 v{tmp+i}, v{mul}, v{src+i}")
        src=tmp
    for i in range(4): a(f"v_cvt_pk_bf16_f32 v{dst+i}, v{src+2*i}, v{src+2*i+1}")
def epi(a,MT,NT,segstride,mul=None):
    a(f"v_lshlrev_b32 v2, 4, v{LANE}")
    k=0
    for mt in range(MT):
        for nt in range(NT):
            for t in range(2):
                d=16+4*(k%4); k+=1
                pack8(a,d,(mt*NT+nt)*16+8*t,tmp=8,mul=mul)
                a(f"global_store_dwordx4 v2, {vr(d)}, s[56:57] offset:{(2*nt+t)*1024} sc1")
        if mt<MT-1: a(f"s_add_u32 s56, s56, {segstride}\ns_addc_u32 s57, s57, 0")
def gemm1(a,DIAG):
    a("s_mov_b32 s52, 0\nL_G1:")
    a(f"""s_mov_b32 s63, 8192
    s_mov_b32 s64, 18
    s_mov_b32 s61, 0
    s_cmp_eq_u32 s52, 2
    s_cbranch_scc1 L_G1Q
    s_lshr_b32 s53, s51, 3
    s_lshl_b32 s39, s52, 2
    s_add_u32 s53, s53, s39
    s_add_u32 s53, s53, 1
    s_cmp_eq_u32 s53, 8
    s_cbranch_scc1 L_G1B
    s_and_b32 s54, s51, 7
    s_lshl_b32 s39, s50, 3
    s_add_u32 s54, s54, s39
    s_and_b32 s55, s54, 15
    s_mov_b32 s60, {KF}
    s_cmp_ge_u32 s54, 16
    s_cselect_b64 s[58:59], {sp(sWV)}, {sp(sWK)}
    s_cselect_b32 s60, {VF}, s60
    s_cselect_b32 s61, 1, 0
    s_lshl_b32 s62, s53, 2
    s_add_u32 s62, s62, {D_KV}
    s_mov_b32 s65, 4
    s_branch L_G1C
    L_G1B:
    s_and_b32 s53, s51, 7
    s_mov_b32 s55, s50
    s_mov_b64 s[58:59], {sp(sBWQ)}
    s_mov_b32 s60, {QB}
    s_mov_b32 s61, 2
    s_mov_b32 s62, {D_KVB}
    s_mov_b32 s63, 2048
    s_mov_b32 s64, 16
    s_mov_b32 s65, 1
    s_branch L_G1C
    L_G1Q:
    s_lshr_b32 s53, s51, 2
    s_and_b32 s55, s51, 3
    s_lshl_b32 s39, s50, 2
    s_add_u32 s55, s55, s39
    s_mov_b64 s[58:59], {sp(sWQ)}
    s_mov_b32 s60, {QF}
    s_lshl_b32 s62, s53, 2
    s_add_u32 s62, s62, {D_Q}
    s_mov_b32 s65, 1
    L_G1C:
    s_lshl_b32 s39, s55, 9
    s_add_u32 s58, s58, s39
    s_addc_u32 s59, s59, 0
    s_lshl_b32 s39, s53, 19""")
    base(a,56,sX,soff=39)
    a("s_cmp_eq_u32 s61, 1\ns_cbranch_scc1 L_G1V")
    gemm(a,256,256,2,0,'s63',56,58,LANE)
    a("s_branch L_G1E\nL_G1V:")
    gemm(a,256,256,2,1,'s63',56,58,LANE)
    a("L_G1E:")
    if DIAG: stamp(a,24,2,0,52,8)
    a(f"""s_lshl_b32 s43, s53, 3
    s_lshl_b32 s39, s41, 2
    s_add_u32 s43, s43, s39
    s_lshl_b32 s43, s43, s64
    s_lshl_b32 s39, s55, 14
    s_add_u32 s43, s43, s39
    s_lshl_b32 s39, s42, 12
    s_add_u32 s43, s43, s39
    s_add_u32 s43, s43, s60""")
    base(a,56,sWS,soff=43)
    a("s_cmp_eq_u32 s61, 2\ns_cbranch_scc1 L_G1S")
    epi(a,4,2,0x40000)
    a(f"s_branch L_G1F\nL_G1S:\nv_mov_b32 v3, {fbits(32**-0.5*math.log2(math.e))}")
    epi(a,4,2,0x10000,mul=3)
    a("L_G1F:")
    signal(a,0,2,soff=62,val='s65')
    if DIAG: stamp(a,5,2,0,52,8)
    a("s_add_u32 s52, s52, 1\ns_cmp_lt_u32 s52, 3\ns_cbranch_scc1 L_G1")
def kv0(a):
    a(f"""s_and_b32 s53, s{sROLE}, 1
    s_and_b32 s54, s{sROLE}, 2
    s_lshl_b32 s54, s54, 4
    s_lshr_b32 s55, s{sROLE}, 2
    s_mov_b32 s60, {KF}
    s_cmp_ge_u32 s54, 32
    s_cselect_b64 s[58:59], {sp(sWV)}, {sp(sWK)}
    s_cselect_b32 s60, {VF}, s60
    s_lshl_b32 s39, s55, 8
    s_add_u32 s58, s58, s39
    s_addc_u32 s59, s59, 0
    s_lshl_b32 s39, s53, 18""")
    base(a,56,sX,soff=39)
    a("s_cmp_ge_u32 s54, 32\ns_cbranch_scc1 L_K0V")
    gemm(a,128,128,4,0,8192,56,58,LANE,NS=4)
    a("s_branch L_K0E\nL_K0V:")
    gemm(a,128,128,4,1,8192,56,58,LANE,NS=4)
    a(f"""L_K0E:
    s_barrier
    s_lshl_b32 s68, s{sWAVE}, 14
    s_cmp_ge_u32 s{sWAVE}, 4
    s_cbranch_scc1 L_K0O
    s_lshl_b32 s39, s{sWAVE}, 21
    s_lshl_b32 s43, s{sROLE}, 6
    s_add_u32 s43, s43, s39""")
    base(a,66,sWK,soff=43); slab_dma(a,66,8192,256,68,4,LANE)
    a(f"""s_branch L_K0W
    L_K0O:
    s_lshr_b32 s39, s{sROLE}, 5
    s_lshl_b32 s39, s39, 21
    s_and_b32 s43, s{sWAVE}, 3
    s_lshl_b32 s43, s43, 19
    s_add_u32 s39, s39, s43
    s_and_b32 s43, s{sROLE}, 31
    s_lshl_b32 s43, s43, 6
    s_add_u32 s43, s39, s43""")
    base(a,66,sWO,soff=43); slab_dma(a,66,2048,256,68,4,LANE)
    a(f"s_cmp_lg_u32 s{sWAVE}, 4\ns_cbranch_scc1 L_K0W"); add1(a,D_CINIT,8)
    a(f"""L_K0W:
    s_lshl_b32 s43, s53, 2
    s_add_u32 s43, s43, s41
    s_lshl_b32 s43, s43, 18
    s_lshl_b32 s39, s55, 13
    s_add_u32 s43, s43, s39
    s_lshl_b32 s39, s42, 12
    s_add_u32 s43, s43, s39
    s_add_u32 s43, s43, s60""")
    base(a,56,sWS,soff=43)
    epi(a,1,2,0)
    signal(a,D_KV,2)
def red8_write(a,src,vaddr,buf,acc=False):
    for b in range(4): a(f"ds_write_b128 v{vaddr}, {(ar if acc else vr)(src+4*b)} offset:{buf+b*1024}")
def kvb_gate(a):
    a(f"""s_lshr_b32 s53, s{sROLE}, 1
    s_and_b32 s54, s{sROLE}, 1
    s_cmp_eq_u32 s54, 1
    s_cselect_b64 s[58:59], {sp(sBWV)}, {sp(sBWK)}
    s_lshl_b32 s39, s{sWAVE}, 13
    s_add_u32 s58, s58, s39
    s_addc_u32 s59, s59, 0
    s_lshl_b32 s55, s{sWAVE}, 13""")
    slab_dma(a,58,64,128,55,2,LANE)
    a(f"""s_lshl_b32 s39, s53, 16
    s_lshl_b32 s43, s{sWAVE}, 8
    s_add_u32 s39, s39, s43""")
    base(a,56,sX,soff=39)
    a(f"""v_and_b32 v6, 31, v{LANE}
    v_lshrrev_b32 v7, 5, v{LANE}
    v_lshlrev_b32 v7, 4, v7
    v_lshl_add_u32 v6, v6, 11, v7""")
    for ks in range(8): a(f"global_load_dwordx4 {vr(32+4*ks)}, v6, s[56:57] offset:{32*ks}")
    a(f"""s_lshl_b32 s39, s{sROLE}, 15
    s_lshl_b32 s43, s{sWAVE}, 12
    s_add_u32 s39, s39, s43""")
    base(a,56,sX,soff=39)
    a(f"v_lshlrev_b32 v8, 6, v{LANE}\nv_and_b32 v9, 0x7ff, v8")
    for i in range(4): a(f"global_load_dwordx4 {vr(64+4*i)}, v8, s[56:57] offset:{16*i}\nglobal_load_dwordx4 {vr(80+4*i)}, v9, {sp(sGW)} offset:{16*i}")
    a(f"""v_bfe_u32 v10, v{LANE}, 2, 2
    v_lshrrev_b32 v11, 5, v{LANE}
    v_lshl_add_u32 v10, v11, 3, v10
    v_lshlrev_b32 v10, 6, v10
    v_bfe_u32 v11, v{LANE}, 4, 1
    v_lshl_add_u32 v10, v11, 5, v10
    v_and_b32 v11, 3, v{LANE}
    v_lshl_add_u32 v10, v11, 3, v10
    v_add_u32 v10, s55, v10
    s_waitcnt vmcnt(8)""")
    for ks in range(8):
        for h in range(2): a(f"ds_read_b64_tr_b16 {ar(4*ks+2*h,2)}, v10 offset:{(16*ks+4*h)*64}")
    a("s_waitcnt lgkmcnt(0)\ns_cmp_eq_u32 s54, 1\ns_cbranch_scc1 L_KVB_V")
    for ks in range(8): a(f"v_mfma_f32_32x32x16_bf16 v[16:31], {ar(4*ks)}, {vr(32+4*ks)}, {'0' if ks==0 else 'v[16:31]'}")
    a("s_branch L_KVB_E\nL_KVB_V:")
    for ks in range(8): a(f"v_mfma_f32_32x32x16_bf16 v[16:31], {vr(32+4*ks)}, {ar(4*ks)}, {'0' if ks==0 else 'v[16:31]'}")
    a("L_KVB_E:\ns_waitcnt vmcnt(0)\nv_mov_b32 v12, 0")
    for i in range(16):
        a(f"""v_lshlrev_b32 v13, 16, v{64+i}
        v_lshlrev_b32 v14, 16, v{80+i}
        v_fmac_f32 v12, v13, v14
        v_and_b32 v13, 0xffff0000, v{64+i}
        v_and_b32 v14, 0xffff0000, v{80+i}
        v_fmac_f32 v12, v13, v14""")
    for x in (1,2,4,8,16):
        a(f"ds_swizzle_b32 v13, v12 offset:{(x<<10)|0x1f}\ns_waitcnt lgkmcnt(0)\nv_add_f32 v12, v12, v13")
    a(f"""v_mul_f32 v12, 0xbfb8aa3b, v12
    v_exp_f32 v12, v12
    s_nop 0
    v_add_f32 v12, 1.0, v12
    v_rcp_f32 v12, v12
    s_lshl_b32 s39, s{sROLE}, 6
    s_lshl_b32 s43, s{sWAVE}, 3
    s_add_u32 s39, s39, s43
    s_add_u32 s39, s39, {GATE}
    v_lshrrev_b32 v13, 5, v{LANE}
    v_lshl_add_u32 v13, v13, 2, s39
    s_mov_b32 exec_lo, 1
    s_mov_b32 exec_hi, 1
    global_store_dword v13, v12, {sp(sWS)} sc1
    s_mov_b64 exec, -1
    s_lshl_b32 s39, s{sWAVE}, 12
    v_lshl_add_u32 v11, v{LANE}, 4, s39
    v_add_u32 v11, 0x10000, v11""")
    red8_write(a,16,11,0)
    a(f"""s_waitcnt lgkmcnt(0)
    s_barrier
    s_cmp_ge_u32 s{sWAVE}, 2
    s_cbranch_scc1 L_KVB_D
    s_lshl_b32 s39, s{sWAVE}, 11
    v_lshl_add_u32 v11, v{LANE}, 4, s39
    v_add_u32 v11, 0x10000, v11""")
    for w in range(8): a(f"ds_read_b128 {vr(32+8*w)}, v11 offset:{w*4096}\nds_read_b128 {vr(36+8*w)}, v11 offset:{w*4096+1024}")
    a("s_waitcnt lgkmcnt(0)")
    for w in range(1,8):
        for i in range(8): a(f"v_add_f32 v{32+i}, v{32+i}, v{32+8*w+i}")
    pack8(a,16,32,acc=False)
    a(f"""s_lshl_b32 s39, s54, 17
    s_lshl_b32 s43, s53, 11
    s_add_u32 s39, s39, s43
    s_lshl_b32 s43, s{sWAVE}, 10
    s_add_u32 s39, s39, s43
    s_add_u32 s39, s39, {KBF}
    v_lshl_add_u32 v11, v{LANE}, 4, s39
    global_store_dwordx4 v11, v[16:19], {sp(sWS)} sc1
    L_KVB_D:""")
    signal(a,D_KVB,2)
```

```python
from common import *
from gemm import gemm
from worker1 import pack8, red8_write, LANE
import math,struct
import os
NT=os.environ.get('NT','')
FX=os.environ.get('FX','')
LIM=os.environ.get('LIM','0x49000000')
def fbits(x): return hex(struct.unpack('<I',struct.pack('<f',x))[0])
def xhalf(a,op,v,t):
    a(f"v_mov_b32 v{t}, v{v}\ns_nop 1\nv_permlane32_swap_b32 v{t}, v{v}\ns_nop 1\n{op} v{v}, v{v}, v{t}")
def maxn(a,dst,regs):
    regs=list(regs)
    a(f"v_max3_f32 v{dst}, v{regs[0]}, v{regs[1]}, v{regs[2]}"); k=3
    while k+1<len(regs): a(f"v_max3_f32 v{dst}, v{dst}, v{regs[k]}, v{regs[k+1]}"); k+=2
    if k<len(regs): a(f"v_max_f32 v{dst}, v{dst}, v{regs[k]}")
def battn(a):
    a(f"""s_lshr_b32 s53, s51, 3
    s_lshl_b32 s39, s50, 2
    s_add_u32 s53, s53, s39
    s_and_b32 s54, s51, 7
    s_lshl_b32 s39, s53, 18""")
    aO,aQ,aK,aV=32,64,80,96; S,NM=32,96
    a(f"s_and_b32 s41, s{sWAVE}, 3\ns_lshr_b32 s42, s{sWAVE}, 2")
    aL,a1=0,112
    a("v_mov_b32 v4, 0x3f803f80\nv_mov_b32 v5, 0x20000\nv_mov_b32 v6, 0\nds_write_b32 v5, v6")
    for i in range(4): a(f"v_accvgpr_write_b32 a{a1+i}, v4")
    a("s_waitcnt lgkmcnt(0)")
    wait_wg(a,D_KVB,160,2)
    a(f"s_lshl_b32 s43, s53, 2\ns_add_u32 s43, s43, s41\ns_lshl_b32 s43, s43, 16\ns_lshl_b32 s39, s54, 13\ns_add_u32 s43, s43, s39\ns_lshl_b32 s39, s42, 12\ns_add_u32 s43, s43, s39\ns_add_u32 s43, s43, {QB}\nv_lshl_add_u32 v2, v{LANE}, 4, s43")
    for k in range(4): a(f"global_load_dwordx4 {ar(aQ+4*k)}, v2, {sp(sWS)} offset:{k*1024} sc1")
    def dma():
        a("s_mov_b32 m0, s45\ns_nop 0")
        for i in range(4): a(f"global_load_lds_dwordx4 v2, s[56:57] offset:{i*1024}")
        a("s_add_u32 m0, m0, 0x8000\ns_nop 0")
        for i in range(4): a(f"global_load_lds_dwordx4 v2, s[58:59] offset:{i*1024}")
        a("s_add_u32 s56, s56, 0x8000\ns_addc_u32 s57, s57, 0\ns_add_u32 s58, s58, 0x8000\ns_addc_u32 s59, s59, 0\ns_xor_b32 s45, s45, 0x10000")
    def rdK():
        for k in range(4): a(f"ds_read_b128 {ar(aK+4*k)}, v3 offset:{k*1024}")
    def rdV():
        for k in range(4): a(f"ds_read_b128 {ar(aV+4*k)}, v3 offset:{0x8000+k*1024}")
    def smm(h,zero=False):
        for tl in range(2):
            d=vr(S+h*32+tl*16,16)
            a(f"v_mfma_f32_32x32x16_bf16 {d}, {ar(aK+tl*8)}, {ar(aQ+h*8)}, {'0' if zero else vr(NM+h*16,16)}")
            a(f"v_mfma_f32_32x32x16_bf16 {d}, {ar(aK+tl*8+4)}, {ar(aQ+h*8+4)}, {d}")
    def sl(h):
        r=[]
        for tl in range(2):
            d=vr(S+h*32+tl*16,16)
            r+=[f"v_mfma_f32_32x32x16_bf16 {d}, {ar(aK+tl*8)}, {ar(aQ+h*8)}, {vr(NM+h*16,16)}",f"v_mfma_f32_32x32x16_bf16 {d}, {ar(aK+tl*8+4)}, {ar(aQ+h*8+4)}, {d}"]
        return [r[0],r[2],r[1],r[3]]
    def pvl(h):
        r=[]
        for k in range(4):
            r+=[f"v_mfma_f32_32x32x16_bf16 {ar(aO+h*16,16)}, {ar(aV+4*k)}, {vr(S+h*32+4*k)}, {ar(aO+h*16,16)}",f"v_mfma_f32_32x32x16_bf16 {ar(aL+h*16,16)}, {ar(a1)}, {vr(S+h*32+4*k)}, {ar(aL+h*16,16)}"]
        return r
    def run(c):
        a(f"""s_lshl_b32 s39, s{sWAVE}, 12
        v_lshl_add_u32 v2, v{LANE}, 4, s39
        v_lshlrev_b32 v3, 4, v{LANE}
        s_mov_b32 s45, s39""")
        base(a,56,sWS,KBF); base(a,58,sWS,VBF)
        dma(); dma()
        for i in range(64): a(f"v_accvgpr_write_b32 a{i}, 0")
        a("s_waitcnt vmcnt(8)\ns_barrier"); rdK(); a("s_waitcnt lgkmcnt(0)")
        smm(0,True); smm(1,True); a.nop(12)
        for h in range(2):
            maxn(a,8,range(S+h*32,S+h*32+32)); xhalf(a,"v_max_f32",8,9)
            for i in range(16): a(f"v_sub_f32 v{NM+h*16+i}, 0, v8")
        for i in range(16): a(f"v_mov_b32 v{S+32+i}, 0\nv_accvgpr_write_b32 a{aV+i}, 0")
        for x in sl(0): a(x)
        a("s_mov_b32 s60, 0\ns_mov_b32 s61, 0\ns_mov_b32 s62, 0x41000000"); a.nop(10); a(f"L_BA_I{c}:")
        PP,SP=eval(os.environ.get('PS','(0,3,6,9,12,15,18,21),(24,27,30,36)'))
        for h in range(2):
            b=S+h*32; pv=pvl(1-h); sm=sl(1-h)
            if c:
                maxn(a,8,range(b,b+32))
                a(f"v_cmp_lt_f32 vcc, s62, v8\ns_nop 1\ns_cbranch_vccnz L_BA_R{h}\nL_BA_B{h}:")
            for i in range(32):
                a(f"v_exp_f32 v{b+i}, v{b+i}")
                if h==1 and i==0: a("s_waitcnt lgkmcnt(4)")
                if h==1 and i==SP[0]: a("s_waitcnt lgkmcnt(0)")
                if i in PP: a(pv[PP.index(i)])
                if i in SP: a(sm[SP.index(i)])
                if h==0 and i==SP[1]: rdV(); a("v_add_u32 v3, 0x1000, v3")
            a("s_nop 0")
            for i in range(16):
                a(f"v_cvt_pk_bf16_f32 v{b+i}, v{b+2*i}, v{b+2*i+1}")
                if i+32 in SP: a(sm[SP.index(i+32)])
            if h==0:
                a(f"s_cmp_eq_u32 s61, 7\ns_cbranch_scc1 L_BA_N{c}\nL_BA_K{c}:"); rdK(); a(f"L_BA_NK{c}:")
        a(f"s_add_u32 s61, s61, 1\ns_cmp_lt_u32 s60, 4\ns_cbranch_scc1 L_BA_I{c}\ns_nop 1")
        for x in pvl(1): a(x)
        a.nop(16)
        a(f"""s_branch L_BA_X{c}
        L_BA_N{c}:
        s_mov_b32 s61, -1
        s_add_u32 s60, s60, 1
        s_waitcnt lgkmcnt(0)
        s_cmp_eq_u32 s60, 4
        s_cbranch_scc1 L_BA_NK{c}
        s_waitcnt vmcnt(0)
        s_barrier
        v_add_u32 v3, 0x8000, v3
        v_and_b32 v3, 0x1ffff, v3
        s_cmp_eq_u32 s60, 3
        s_cbranch_scc1 L_BA_K{c}""")
        dma(); a(f"s_branch L_BA_K{c}")
        for h in range(2*c):
            b=S+h*32
            a(f"L_BA_R{h}:"); xhalf(a,"v_max_f32",8,9)
            a("v_max_f32 v8, 0, v8\nv_sub_f32 v9, 0, v8\nv_exp_f32 v9, v9")
            for i in range(32): a(f"v_sub_f32 v{b+i}, v{b+i}, v8")
            a.nop(16)
            for i in range(16): a(f"v_sub_f32 v{NM+h*16+i}, v{NM+h*16+i}, v8")
            for r in [aL+h*16]+list(range(aO+h*16,aO+h*16+16)): a(f"v_accvgpr_read_b32 v10, a{r}\nv_mul_f32 v10, v10, v9\nv_accvgpr_write_b32 a{r}, v10")
            a(f"s_branch L_BA_B{h}")
        a(f"L_BA_X{c}:\nv_accvgpr_read_b32 v4, a{aL}\nv_accvgpr_read_b32 v6, a{aL+16}")
    run(0)
    a(f"""s_mov_b32 s39, {LIM}
    v_cmp_nge_f32 vcc, s39, v4
    v_cmp_nge_f32 s[42:43], s39, v6
    v_mov_b32 v5, 0x20000
    s_or_b64 vcc, vcc, s[42:43]
    s_lshr_b32 s42, s{sWAVE}, 2
    s_cbranch_vccz L_BA_V
    v_mov_b32 v7, 1
    ds_write_b32 v5, v7
    s_waitcnt lgkmcnt(0)
    L_BA_V:
    s_barrier
    ds_read_b32 v7, v5
    s_waitcnt lgkmcnt(0)
    v_readfirstlane_b32 s39, v7
    s_cmp_eq_u32 s39, 0
    s_cbranch_scc1 L_BA_E""")
    run(1)
    a(f"""L_BA_E:
    s_lshl_b32 s43, s53, 2
    s_add_u32 s43, s43, s41
    s_lshl_b32 s39, s43, 7
    s_add_u32 s39, s39, {GATE}
    v_and_b32 v8, 31, v{LANE}
    v_lshl_add_u32 v8, v8, 2, s39
    global_load_dword v8, v8, {sp(sWS)} sc1
    s_lshl_b32 s43, s43, 16
    s_lshl_b32 s39, s54, 13
    s_add_u32 s43, s43, s39
    s_lshl_b32 s39, s42, 12
    s_add_u32 s43, s43, s39
    s_add_u32 s43, s43, {OB}
    v_lshl_add_u32 v2, v{LANE}, 4, s43""")
    a("v_rcp_f32 v4, v4\nv_rcp_f32 v6, v6\ns_waitcnt vmcnt(0)\nv_sub_f32 v8, 1.0, v8\nv_mul_f32 v4, v4, v8\nv_mul_f32 v6, v6, v8")
    for h in range(2):
        for t in range(2):
            d=32+8*h+4*t
            pack8(a,d,aO+h*16+8*t,mul=4+2*h,tmp=16)
            a(f"global_store_dwordx4 v2, {vr(d)}, {sp(sWS)} offset:{(2*h+t)*1024} sc1")
    a("s_lshr_b32 s53, s53, 1\ns_lshl_b32 s53, s53, 2")
    signal(a,D_OB,2,soff=53)
def final_weights(a):
    a(f"""s_barrier
    s_and_b32 s43, s51, 1
    s_lshl_b32 s43, s43, 3
    s_add_u32 s43, s43, s{sWAVE}
    s_lshl_b32 s44, s51, 6
    s_xor_b32 s45, s44, 64
    s_lshl_b32 s55, s{sWAVE}, 14
    s_add_u32 s46, s55, 0x2000
    v_bfe_u32 v10, v{LANE}, 2, 2
    v_lshrrev_b32 v11, 5, v{LANE}
    v_lshl_add_u32 v10, v11, 2, v10
    v_lshlrev_b32 v10, 6, v10
    v_bfe_u32 v11, v{LANE}, 4, 1
    v_lshl_add_u32 v10, v11, 5, v10
    v_and_b32 v11, 3, v{LANE}
    v_lshl_add_u32 v10, v11, 3, v10
    v_add_u32 v11, s55, v10
    s_lshl_b32 s47, s43, 19""")
    a(f"""s_lshl_b32 s42, s43, 17
    s_xor_b32 s39, s{sROLE}, 1
    s_lshl_b32 s39, s39, 16
    s_lshl_b32 s48, s{sWAVE}, 13
    s_add_u32 s39, s39, s48
    v_lshlrev_b32 v12, 4, v{LANE}
    v_mov_b32 v16, -1
    v_mov_b32 v17, -1
    v_mov_b32 v18, -1
    v_mov_b32 v19, -1""")
    base(a,56,sWS,XB+4096,soff=39)
    st_intra(a,[f"global_store_dwordx4 v12, v[16:19], s[56:57] offset:{i*1024-4096}" for i in range(8)])
    a(f"""s_and_b32 s44, s44, 0x780
    s_and_b32 s39, s51, 1
    s_lshl_b32 s39, s39, 6
    s_add_u32 s39, s39, s55
    v_and_b32 v11, 63, v10
    v_lshrrev_b32 v10, 6, v10
    v_lshl_add_u32 v10, v10, 7, v11
    v_add_u32 v11, s39, v10
    s_and_b32 s39, s{sWAVE}, 1
    s_lshl_b32 s39, s39, 11
    v_add_u32 v14, s39, v11
    v_subrev_u32 v11, s39, v11
    v_add_u32 v11, 2048, v11
    v_xor_b32 v13, 64, v11
    v_xor_b32 v15, 64, v14""")
    def iss(n):
        a(f"s_add_u32 s39, s{47 if n<4 else 42}, s44"); base(a,58,sWO if n<4 else sBWO,(n%4)*64*2048,soff=39)
        slab_dma(a,58,2048,64,(55,46)[n&1],2,LANE,128,n==0)
    iss(0); iss(1)
    for n in range(5):
        a(f"s_waitcnt vmcnt({8 if n<4 else 0})")
        for ks in range(4):
            for t in range(2):
                for h in range(2):
                    d=ar((n*4+ks)*8+4*t+2*h,2) if n<4 else vr(32+8*ks+4*t+2*h,2)
                    a(f"ds_read_b64_tr_b16 {d}, v{(14+t,11+2*t)[ks&1]} offset:{(n&1)*0x2000+(16*(ks&2)+8*h)*128}")
        if n<3: a("s_waitcnt lgkmcnt(0)"); iss(n+2)
    a(f"s_add_u32 s55, s48, 0x10000\nv_lshl_add_u32 v11, v{LANE}, 4, s55\ns_waitcnt lgkmcnt(0)\ns_barrier")
    for f in range(8): a(f"ds_write_b128 v11, {vr(32+4*f)} offset:{f*1024}")
def xattn(a):
    Q,K,M,SX,SM=0+4,36,68,100,36
    a(f"""s_lshl_b32 s39, s64, 18
    s_lshl_b32 s43, s51, 13
    s_add_u32 s65, s39, s43
    s_lshr_b32 s66, s65, 2
    v_lshlrev_b32 v2, 4, v{LANE}
    v_and_b32 v3, 7, v{LANE}
    v_lshlrev_b32 v3, 4, v3
    v_lshrrev_b32 v1, 5, v{LANE}
    v_lshl_add_u32 v3, v1, 7, v3""")
    base(a,56,sWS,OB,soff=66)
    a("global_load_dwordx4 v[120:123], v2, s[56:57]\nglobal_load_dwordx4 v[124:127], v2, s[56:57] offset:1024")
    base(a,56,sWS,QF+4096,soff=65); base(a,58,sWS,KF+4096,soff=65); base(a,60,sWS,KM,soff=66)
    for t in range(8):
        a(f"global_load_dwordx4 {vr(Q+4*t)}, v2, s[56:57] offset:{t*1024-4096} sc1{NT}")
        a(f"global_load_dwordx4 {vr(K+4*t)}, v2, s[58:59] offset:{t*1024-4096} sc1{NT}")
    for t in range(8): a(f"global_load_dwordx4 {vr(M+4*t)}, v3, s[60:61] offset:{t*256} sc1")
    a(f"""s_lshl_b32 s39, s64, 7
    s_add_u32 s39, s39, {GATE}
    v_and_b32 v116, 31, v{LANE}
    v_lshl_add_u32 v117, v116, 2, s39
    global_load_dword v117, v117, {sp(sWS)} sc1
    v_lshlrev_b32 v118, 2, v1
    v_sub_u32 v118, v116, v118
    v_lshlrev_b32 v119, 3, v1
    v_lshl_add_u32 v119, v116, 4, v119""")
    base(a,56,sWS,VF+4096,soff=65); base(a,58,sWS,VM,soff=66); base(a,60,sWS,OA+4096,soff=65)
    for t in range(8):
        a(f"s_waitcnt vmcnt({9+2*(7-t)})\nv_mfma_f32_32x32x16_bf16 {vr(SX,16)}, {vr(K+4*t)}, {vr(Q+4*t)}, {'0' if t==0 else vr(SX,16)}")
    a("s_waitcnt vmcnt(0)")
    for t in range(8): a(f"v_mfma_f32_32x32x16_bf16 {vr(SM,16)}, {vr(M+4*t)}, {vr(Q+4*t)}, {'0' if t==0 else vr(SM,16)}")
    V=M; W=Q
    a.nop(4)
    for u in range(8): a(f"global_load_dwordx4 {vr(V+4*u)}, v2, s[56:57] offset:{u*1024-4096} sc1{NT}")
    for dt in range(4):
        a(f"global_load_dwordx2 {vr(W+4*dt,2)}, v119, s[58:59] offset:{dt*512} sc1")
        a(f"v_mov_b32 v{W+4*dt+2}, 0\nv_mov_b32 v{W+4*dt+3}, 0")
    a("v_mov_b32 v120, 0xff800000")
    for i in range(16): a(f"v_cmp_ge_i32 s[{68+2*(i%8)}:{69+2*(i%8)}], v118, {8*(i//4)+i%4}\n" + (f"v_cndmask_b32 v{SX+i-2}, v120, v{SX+i-2}, s[{68+2*((i-2)%8)}:{69+2*((i-2)%8)}]" if i>=2 else ""))
    a("s_nop 1")
    for i in (14,15): a(f"v_cndmask_b32 v{SX+i}, v120, v{SX+i}, s[{68+2*(i%8)}:{69+2*(i%8)}]")
    vals=list(range(SX,SX+16))+list(range(SM,SM+4))
    maxn(a,121,vals); xhalf(a,"v_max_f32",121,122)
    c=fbits(128**-0.5*math.log2(math.e))
    a(f"s_mov_b32 s39, {c}\nv_mul_f32 v121, s39, v121")
    for r in vals: a(f"v_fma_f32 v{r}, v{r}, s39, -v121")
    for r in vals: a(f"v_exp_f32 v{r}, v{r}")
    a(f"s_nop 0\nv_add_f32 v121, v{vals[0]}, v{vals[1]}")
    for r in vals[2:]: a(f"v_add_f32 v121, v121, v{r}")
    xhalf(a,"v_add_f32",121,122)
    a("v_rcp_f32 v121, v121")
    for i in range(8): a(f"v_cvt_pk_bf16_f32 v{SX+i}, v{SX+2*i}, v{SX+2*i+1}")
    a(f"v_cvt_pk_bf16_f32 v{SX+8}, v{SM}, v{SM+1}\nv_cvt_pk_bf16_f32 v{SX+9}, v{SM+2}, v{SM+3}\nv_mov_b32 v{SX+10}, 0\nv_mov_b32 v{SX+11}, 0\nv_mul_f32 v121, v121, v117\ns_waitcnt vmcnt(0)")
    O=[36,52]
    def pv(dt):
        o=vr(O[dt%2],16)
        a(f"v_mfma_f32_32x32x16_bf16 {o}, {vr(V+8*dt)}, {vr(SX)}, 0\nv_mfma_f32_32x32x16_bf16 {o}, {vr(V+8*dt+4)}, {vr(SX+4)}, {o}\nv_mfma_f32_32x32x16_bf16 {o}, {vr(W+4*dt)}, {vr(SX+8)}, {o}")
    pv(0)
    for dt in range(4):
        if dt<3: pv(dt+1); a.nop(10)
        else: a.nop(12)
        for t in range(2):
            pack8(a,20+4*t,O[dt%2]+8*t,acc=False,mul=121,tmp=28)
        st_intra(a,[f"global_store_dwordx4 v2, {vr(20+4*t)}, s[60:61] offset:{(2*dt+t)*1024-4096}" for t in range(2)])
        a("s_nop 1")
def final(a,DIAG):
    final_weights(a)
    a("s_mov_b32 s52, 0\ns_mov_b32 s49, 0\nL_FB:")
    a(f"""s_lshr_b32 s62, 8, s52
    s_lshl_b32 s39, s62, 3
    s_sub_u32 s63, 64, s39
    s_max_u32 s62, s62, 2
    s_mul_i32 s39, s62, s50
    s_add_u32 s63, s63, s39
    s_add_u32 s67, s63, s62
    s_add_u32 s67, s67, 2
    s_cmp_ge_u32 s67, 64
    s_cselect_b32 s67, 191, s67
    s_lshr_b32 s53, s63, 3
    s_lshl_b32 s53, s53, 2
    s_cmp_lg_u32 s{sWAVE}, 0
    s_cbranch_scc1 L_FB_W""")
    wait_ge(a,D_KV,128,2,soff=53); wait_ge(a,D_Q,16,2,soff=53); wait_ge(a,D_OB,16,2,soff=53); wait_ge(a,D_PROG,"s67",2,sleep=2)
    a("L_FB_W:")
    if DIAG: stamp(a,8,2,0,52,24)
    a(f"s_barrier\ns_add_u32 s64, s63, s{sWAVE}\ns_cmp_ge_u32 s{sWAVE}, s62\ns_cbranch_scc1 L_FB_X")
    xattn(a)
    a("L_FB_X:\ns_lshl_b32 s53, s52, 2\ns_add_u32 s53, s53, s50\ns_lshl_b32 s53, s53, 2")
    signal(a,D_XA,2,soff=53)
    wait_wg(a,D_XA,32,2,soff=53,sleep=1)
    if DIAG: stamp(a,9,2,0,52,24)
    B=48; ACC=16; WB=112; PR=120; HS=(12,124); T=8
    a(f"""v_lshlrev_b32 v2, 4, v{LANE}
    s_lshl_b32 s39, s{sWAVE}, 13
    v_add_u32 v3, s39, v2
    v_add_u32 v4, s39, v2
    v_add_u32 v3, 0x10000, v3
    s_lshl_b32 s39, s{sWAVE}, 10
    v_add_u32 v5, s39, v2
    v_and_b32 v6, 31, v{LANE}
    v_lshrrev_b32 v7, 5, v{LANE}
    v_lshlrev_b32 v7, 3, v7
    v_lshl_add_u32 v6, v6, 11, v7
    v_and_b32 v7, 0xfff, v5
    s_lshl_b32 s39, s{sWAVE}, 4
    s_lshl_b32 s43, s51, 6
    s_add_u32 s39, s39, s43
    v_add_u32 v6, s39, v6
    s_and_b32 s44, s51, 1
    s_lshl_b32 s44, s44, 3
    s_add_u32 s44, s44, s{sWAVE}
    s_lshl_b32 s44, s44, 14
    s_and_b32 s39, s{sWAVE}, 1
    s_lshl_b32 s39, s39, 10
    v_subrev_u32 v1, s39, v2
    v_add_u32 v1, 1024, v1
    v_add_u32 v2, s39, v2""")
    def setb(seg):
        a(f"s_lshl_b32 s39, s{seg}, 18\ns_add_u32 s39, s39, s44"); base(a,56,sWS,OA+4096,soff=39); base(a,68,56,8192)
        a("s_lshr_b32 s39, s39, 2"); base(a,58,sWS,OB,soff=39)
    def ld(p,slot):
        if FX=='nold': return
        if p%5==4: a(f"global_load_dwordx4 {vr(B+4*slot)}, v{2-(p//5&1)}, s[58:59] offset:{(p//5&2)*1024}")
        else:
            kk=p-p//5; a(f"global_load_dwordx4 {vr(B+4*slot)}, v{2-(kk&1)}, {sp(56 if kk<8 else 68)} offset:{(kk&6)*1024-4096} sc1")
    def mbox(d,xor,add):
        a(f"s_xor_b32 s39, s{sROLE}, {xor}\ns_lshl_b32 s39, s39, 4\ns_add_u32 s39, s39, s49")
        a("s_lshl_b32 s39, s39, 12"); base(a,d,sWS,XB+add*4096,soff=39)
    def chk():
        a(f"v_max3_u32 v8, v{PR}, v{PR+1}, v{PR+2}\nv_max_u32 v8, v8, v{PR+3}\nv_cmp_eq_u32 vcc, -1, v8\ns_nop 0")
    def fin(first,back,hs):
        L=a.lab('P'); D=a.lab('PD')
        if first: chk(); a(f"s_cbranch_vccz {D}")
        a(f"s_mov_b32 s{sSPIN}, {SPINMAX}\n{L}:"); spin_check(a)
        a(f"global_load_dwordx4 {vr(PR)}, v7, s[46:47] sc1\ns_waitcnt vmcnt(0)"); chk(); a(f"s_cbranch_vccnz {L}\n{D}:")
        a(f"s_add_u32 s39, s63, s64\ns_sub_u32 s39, s39, {back}\ns_lshl_b32 s39, s39, 16"); base(a,60,sOUT,soff=39)
        for i in range(0,4,2): a(f"v_pk_add_f32 {vr(PR+i,2)}, {vr(PR+i,2)}, {vr(hs+i,2)}")
        a(f"v_cvt_pk_bf16_f32 v{PR}, v{PR}, v{PR+1}\nv_cvt_pk_bf16_f32 v{PR+1}, v{PR+2}, v{PR+3}\nglobal_store_dwordx2 v6, {vr(PR,2)}, s[60:61]")
    def mm(t,p,u):
        if FX=='nomm' and p: return
        w=vr(WB+4*t) if p%5==4 else ar((p-p//5)*8+4*t)
        a(f"v_mfma_f32_32x32x16_bf16 {vr(ACC+16*t,16)}, {w}, {vr(B+4*((4*u+p)%16))}, {'0' if p==0 else vr(ACC+16*t,16)}")
    def wb(t,j): a(f"ds_read_b128 {vr(WB+4*t)}, v3 offset:{(2*j+t)*1024}")
    setb(63)
    for p in range(16): ld(p,p)
    a("s_mov_b32 s64, 0\nL_FS:")
    for u in range(4):
        h=HS[u&1]
        for q in range(20):
            lg=q in (4,9,14,19,8,13,18) or 7<=q<=13
            a(f"s_waitcnt vmcnt({max(15-q,11)})"+(" lgkmcnt(0)" if lg else ""))
            mm(0,q,u)
            if q>=4:
                mm(1,q-4,u)
                if q==8: a("s_add_u32 s65, s64, 1\ns_cmp_lt_u32 s65, s62\ns_cselect_b32 s65, s65, s64\ns_add_u32 s65, s65, s63"); setb(65)
                ld((q+12)%20,(4*u+q-4)%16)
            if q%5==0: wb(0,q//5)
            if q%5==4: wb(1,q//5)
            if q==4: mbox(46,0,-2); a(f"global_load_dwordx4 {vr(PR)}, v7, s[46:47] sc1")
            if (q==5 or q==17) and FX!='nobar': a("s_barrier")
            if q==6: a(f"ds_read_b128 {vr(h)}, v5\nds_read_b128 {vr(T)}, v5 offset:8192")
            if 7<=q<=13:
                a(f"v_pk_add_f32 {vr(h,2)}, {vr(h,2)}, {vr(T,2)}\nv_pk_add_f32 {vr(h+2,2)}, {vr(h+2,2)}, {vr(T+2,2)}")
                if q<13: a(f"ds_read_b128 {vr(T)}, v5 offset:{(q-5)*8192}")
            if q==14:
                a(f"s_cmp_lt_u32 s{sWAVE}, 4\ns_cbranch_scc1 L_FN{u}\ns_cmp_eq_u32 s64, 0\ns_cbranch_scc1 L_FN{u}")
                mbox(60,1,-1); st_intra(a,[f"global_store_dwordx4 v7, {vr(h)}, s[60:61]"]); a(f"L_FN{u}:")
        a.nop(10); red8_write(a,ACC,4,0)
        for p in range(16,20):
            if p==19: a("s_waitcnt lgkmcnt(4)")
            mm(1,p,u); ld(p-4,(4*u+p)%16)
        a(f"s_cmp_ge_u32 s{sWAVE}, 4\ns_cbranch_scc1 L_FA{u}\ns_cmp_lt_u32 s64, 2\ns_cbranch_scc1 L_FA{u}")
        fin(True,2,HS[1-(u&1)])
        a(f"L_FA{u}:\ns_add_u32 s64, s64, 1\ns_add_u32 s49, s49, 1\ns_waitcnt lgkmcnt(0)"); a.nop(9)
        red8_write(a,ACC+16,4,4096)
        if u&1: a(f"s_cmp_lt_u32 s64, s62\ns_cbranch_scc1 {'L_FS' if u==3 else 'L_FC'}")
        else: a("s_cmp_ge_u32 s64, s62\ns_cbranch_scc1 L_FD")
        if u&1:
            for i in range(4): a(f"v_mov_b32 v{HS[0]+i}, v{HS[1]+i}")
            if u==1: a("s_branch L_FD\nL_FC:")
    a("L_FD:\ns_waitcnt lgkmcnt(0)\ns_barrier")
    for w in range(8): a(f"ds_read_b128 {vr(ACC+4*w)}, v5 offset:{w*8192}")
    mbox(60,1,-1); a("s_waitcnt lgkmcnt(0)")
    for n in (16,8,4):
        for i in range(0,n,2): a(f"v_pk_add_f32 {vr(ACC+i,2)}, {vr(ACC+i,2)}, {vr(ACC+n+i,2)}")
    a(f"s_cmp_lt_u32 s{sWAVE}, 4\ns_cbranch_scc1 L_FG"); st_intra(a,[f"global_store_dwordx4 v7, {vr(ACC)}, s[60:61]"]); a(f"s_branch L_FE\nL_FG:\ns_cmp_lt_u32 s64, 2\ns_cbranch_scc1 L_FH")
    mbox(46,0,-2); fin(False,2,HS[0])
    a("L_FH:"); mbox(46,0,-1); fin(False,1,ACC)
    a("L_FE:\ns_waitcnt vmcnt(0)")
    if DIAG: stamp(a,10,2,0,52,24)
    a("s_add_u32 s52, s52, 1\ns_cmp_lt_u32 s52, 4\ns_cbranch_scc1 L_FB")
```
